```python
import torch

def _softmax(x, axis=-1):
    return torch.softmax(x, dim=axis)
def _gelu(x):
    return torch.nn.functional.gelu(x, approximate="tanh")
def _silu(x):
    return torch.nn.functional.silu(x)
def _sigmoid(x):
    return torch.sigmoid(x)
def _layernorm(x, axis=-1, eps=1e-5):
    m = x.mean(dim=axis, keepdim=True)
    v = x.var(dim=axis, keepdim=True, unbiased=False)
    return (x - m) / torch.sqrt(v + eps)
def _scatter_add(tgt, idx, src, axis=0):
    return tgt.clone().index_add_(axis, idx, src)
def _segment_sum(src, seg, n):
    out = torch.zeros((n,) + src.shape[1:], dtype=src.dtype)
    return out.index_add_(0, seg, src)
def _pad(x, pw):
    flat = tuple(v for pair in reversed(pw) for v in pair)
    return torch.nn.functional.pad(x, flat)

kernel_name = 'gated_mix__ssm_conv_s5__linear_attn_block__prompt'

def setup_inputs():

    _w = (lambda a: (lambda t: t.to(torch.bfloat16) if t.is_floating_point() else t)(torch.as_tensor(a)))
    def _A_setup():
        B, S, D = 1, 2048, 512
        P = D
        Lambda_re = -0.5 * (lambda _x: torch.exp(torch.as_tensor(_x)))((lambda *s: torch.randn(*s, dtype=torch.bfloat16) * 0.2)(P))
        Lambda_im = (lambda *s: torch.randn(*s, dtype=torch.bfloat16) * 0.8)(P) * 1.0
        B_re = (lambda *s: torch.randn(*s, dtype=torch.bfloat16) * 0.4)(P, D) * (D ** -0.5)
        B_im = (lambda *s: torch.randn(*s, dtype=torch.bfloat16) * 0.4)(P, D) * (D ** -0.5)
        C_re = (lambda *s: torch.randn(*s, dtype=torch.bfloat16) * 0.4)(D, P) * (P ** -0.5)
        C_im = (lambda *s: torch.randn(*s, dtype=torch.bfloat16) * 0.4)(D, P) * (P ** -0.5)
        log_dt = (lambda *s: torch.randn(*s, dtype=torch.bfloat16) * 0.2)(P) * 0.3 - 2.0
        Dskip = (lambda *s: torch.randn(*s, dtype=torch.bfloat16) * 0.05)(D)
        return {
            "x": _w((lambda *s: torch.randn(*s, dtype=torch.bfloat16) * 0.05)(B, S, D)),
            "Lambda_re": _w(Lambda_re),
            "Lambda_im": _w(Lambda_im),
            "B_re": _w(B_re),
            "B_im": _w(B_im),
            "C_re": _w(C_re),
            "C_im": _w(C_im),
            "log_dt": _w(log_dt),
            "Dskip": _w(Dskip),
        }
    _A_in = _A_setup()

    def _B_setup():
        B, S, D = 1, 2048, 512
        return {
            "x": _w((lambda *s: torch.randn(*s, dtype=torch.bfloat16) * 0.05)(B, S, D)),
            "wqkv": _w((lambda *s: torch.randn(*s, dtype=torch.bfloat16) * 0.8)(D, 3 * D)),
            "wo": _w((lambda *s: torch.randn(*s, dtype=torch.bfloat16) * 0.05)(D, D)),
        }
    _B_in = _B_setup()

    return {
        "A_x": _A_in["x"],
        "A_Lambda_re": _A_in["Lambda_re"],
        "A_Lambda_im": _A_in["Lambda_im"],
        "A_B_re": _A_in["B_re"],
        "A_B_im": _A_in["B_im"],
        "A_C_re": _A_in["C_re"],
        "A_C_im": _A_in["C_im"],
        "A_log_dt": _A_in["log_dt"],
        "A_Dskip": _A_in["Dskip"],
        "B_x": _B_in["x"],
        "B_wqkv": _B_in["wqkv"],
        "B_wo": _B_in["wo"],
        "gate_w": _w((lambda *s: torch.randn(*s, dtype=torch.bfloat16) * 0.05)(512) * 16.0),
    }

def reference(A_x, A_Lambda_re, A_Lambda_im, A_B_re, A_B_im, A_C_re, A_C_im, A_log_dt, A_Dskip, B_x, B_wqkv, B_wo, gate_w):
    def _A_ref(x, Lambda_re, Lambda_im, B_re, B_im, C_re, C_im, log_dt, Dskip):
        Bsz, L, H = x.shape
        Lam = Lambda_re + 1j * Lambda_im
        Bmat = B_re + 1j * B_im
        Cmat = C_re + 1j * C_im
        dt = torch.exp(log_dt)
        Lam_bar = torch.exp(dt * Lam)
        B_bar = ((Lam_bar - 1.0) / Lam)[:, None] * Bmat
        Bu = torch.einsum("bld,pd->blp", x + 0j, B_bar)
        h = torch.zeros_like(Bu[:, 0, :])
        hs = []
        for t in range(L):
            h = Lam_bar[None, :] * h + Bu[:, t, :]
            hs.append(h)
        hseq = torch.stack(hs, 1)
        y = 2.0 * torch.einsum("blp,dp->bld", hseq, Cmat).real + x * Dskip[None, None, :]
        return y

    def _B_ref(x, wqkv, wo):
        B, S, D = x.shape
        H = 32; Dh = D // H
        qkv = (lambda x, *d: x.permute(*d))((x @ wqkv).reshape(B, S, 3, H, Dh), 2, 0, 3, 1, 4)
        q, k, v = qkv[0], qkv[1], qkv[2]
        phi = lambda t: torch.where(t > 0, t + 1, torch.exp(t)) + 1e-6
        pq, pk = phi(q), phi(k)
        kv = torch.einsum("bhsd,bhse->bhde", pk, v)
        z = torch.einsum("bhsd->bhd", pk)
        num = torch.einsum("bhqd,bhde->bhqe", pq, kv)
        den = torch.einsum("bhqd,bhd->bhq", pq, z)[..., None] + 1e-6
        o = num / den
        return (lambda x, *d: x.permute(*d))(o, 0, 2, 1, 3).reshape(B, S, D) @ wo

    x = A_x
    g = _sigmoid((x * gate_w).sum(-1, keepdims=True))
    a = _A_ref(x, A_Lambda_re, A_Lambda_im, A_B_re, A_B_im, A_C_re, A_C_im, A_log_dt, A_Dskip)
    b = _B_ref(x, B_wqkv, B_wo)
    return g * a + (1 - g) * b
```

```python
import re, copy

REG_RE = re.compile(r'^(-|\|)?(abs\()?([vas])(\d+|\[(\d+):(\d+)\])\)?\|?$')

def parse_reg(tok):
    tok = tok.strip()
    if tok in ('vcc', 'exec', 'm0', 'scc'):
        return [tok]
    if tok in ('vcc_lo', 'vcc_hi'):
        return ['vcc']
    if tok in ('exec_lo', 'exec_hi'):
        return ['exec']
    m = REG_RE.match(tok)
    if not m:
        return []
    k = m.group(3)
    if m.group(5) is not None:
        return [(k, i) for i in range(int(m.group(5)), int(m.group(6)) + 1)]
    return [(k, int(m.group(4)))]

TRANS = ('v_exp_f32', 'v_log_f32', 'v_rcp_f32', 'v_rsq_f32', 'v_sqrt_f32', 'v_sin_f32', 'v_cos_f32', 'v_rcp_iflag_f32')

class Ins:
    __slots__ = ('text', 'op', 'dst', 'src', 'kind', 'ws', 'srcA', 'srcC', 'dpp', 'wide_data', 'ldsdma')
    def __init__(self, text):
        self.text = text
        t = text.split(';')[0].strip()
        parts = t.split(None, 1)
        op = parts[0]
        self.op = op
        rest = parts[1] if len(parts) > 1 else ''
        ops = []
        depth = 0; cur = ''
        for ch in rest:
            if ch == '[' or ch == '(': depth += 1
            if ch == ']' or ch == ')': depth -= 1
            if ch == ',' and depth == 0:
                ops.append(cur.strip()); cur = ''
            else:
                cur += ch
        if cur.strip(): ops.append(cur.strip())
        mods = ''
        if ops:
            last = ops[-1].split(None, 1)
            ops[-1] = last[0]
            mods = last[1] if len(last) > 1 else ''
        regs = [parse_reg(o) for o in ops]
        self.dst = set(); self.src = set(); self.srcA = set(); self.srcC = set()
        self.dpp = ('_dpp' in op) or ('quad_perm' in mods) or ('row_' in mods)
        self.wide_data = set(); self.ldsdma = False
        self.ws = 1
        base = op.replace('_e32', '').replace('_e64', '').replace('_dpp', '')
        allr = lambda lst: set(r for l in lst for r in l)
        if op == 's_nop':
            self.kind = 'nop'; self.ws = int(ops[0], 0) + 1
        elif op.startswith('v_mfma'):
            self.kind = 'mfma'
            self.dst = set(regs[0]); self.srcA = set(regs[1]) | set(regs[2]); self.srcC = set(regs[3])
            self.src = self.srcA | self.srcC
        elif op.startswith('buffer_') or op.startswith('global_'):
            self.kind = 'vmem'
            is_lds = bool(re.search(r'\blds\b', mods))
            if 'store' in op or 'atomic' in op or is_lds:
                self.src = allr(regs)
                if is_lds:
                    self.src.add('m0'); self.ldsdma = True
                if 'store' in op and ('x3' in op or 'x4' in op):
                    self.wide_data = set(regs[0] if op.startswith('buffer_') else regs[1])
            else:
                self.dst = set(regs[0]); self.src = allr(regs[1:])
                if 'd16' in op: self.src |= self.dst
        elif op.startswith('ds_'):
            self.kind = 'ds'
            if 'write' in op or (op.startswith('ds_add') and 'rtn' not in op):
                self.src = allr(regs)
            else:
                self.dst = set(regs[0]); self.src = allr(regs[1:])
        elif op.startswith('s_load') or op.startswith('s_memtime') or op.startswith('s_memrealtime'):
            self.kind = 'smem'
            self.dst = set(regs[0]); self.src = allr(regs[1:])
        elif op.startswith('v_'):
            self.kind = 'trans' if base in TRANS else 'valu'
            if 'swap' in op:
                self.dst = set(regs[0]) | set(regs[1]); self.src = set(self.dst)
            elif base in ('v_add_co_u32', 'v_addc_co_u32', 'v_sub_co_u32', 'v_mad_u64_u32'):
                self.dst = set(regs[0]) | set(regs[1]); self.src = allr(regs[2:])
            else:
                self.dst = set(regs[0]); self.src = allr(regs[1:])
                if 'fmac' in op or self.dpp or base == 'v_writelane_b32': self.src |= self.dst
        elif op.startswith('s_'):
            self.kind = 'salu'
            if op.startswith('s_cmp') or op.startswith('s_cbranch') or op in ('s_branch', 's_barrier', 's_waitcnt', 's_endpgm', 's_sleep', 's_setprio', 's_bitcmp1_b32', 's_bitcmp0_b32'):
                self.src = allr(regs)
                if 'vcc' in op: self.src.add('vcc')
            else:
                self.dst = set(regs[0]); self.src = allr(regs[1:])
                if 'saveexec' in op: self.dst.add('exec')
        else:
            raise ValueError('cannot classify ' + text)

isv = lambda r: isinstance(r, tuple) and r[0] in 'va'
iss = lambda r: (isinstance(r, tuple) and r[0] == 's') or r == 'vcc'

def need_ws(p, c):
    n = 0
    valu_p = p.kind in ('valu', 'trans')
    valu_c = c.kind in ('valu', 'trans')
    if valu_p:
        vd = set(r for r in p.dst if isv(r)); sd = set(r for r in p.dst if iss(r))
        if c.kind == 'mfma' and vd & c.src: n = max(n, 2)
        if valu_c:
            if p.kind == 'trans' and c.kind != 'trans' and vd & c.src: n = max(n, 1)
            if p.kind == 'trans' and c.kind == 'trans' and vd & c.src: n = max(n, 1)
            if ('permlane' in c.op or c.dpp) and vd & c.src: n = max(n, 2)
            if ('readlane' in c.op or 'readfirstlane' in c.op) and vd & c.src: n = max(n, 1)
            if sd & c.src: n = max(n, 4 if ('readlane' in c.op or 'writelane' in c.op) else 2)
            if 'exec' in p.dst: n = max(n, 5)
        if p.kind == 'trans' and c.kind in ('vmem', 'ds') and vd & c.src: n = max(n, 1)
        if c.kind == 'vmem' and sd & c.src: n = max(n, 5)
        if c.kind in ('salu', 'smem') and sd & c.src: n = max(n, 1)
        if c.kind == 'mfma' and 'exec' in p.dst: n = max(n, 4)
    if p.kind == 'mfma':
        k16 = '16x16x16' in p.op
        big = '32x32' in p.op
        far = 12 if big else 8
        if c.kind == 'mfma':
            if p.dst & c.srcA: n = max(n, far)
            if p.dst & c.srcC:
                if p.dst == c.srcC and p.op == c.op: n = max(n, 2 if k16 else 0)
                else: n = max(n, 10 if big else 6)
            elif p.dst & c.dst:
                n = max(n, 10 if big else 6)
        else:
            if p.dst & (c.src | c.dst): n = max(n, far)
            if valu_c and p.srcC & c.dst: n = max(n, 7 if big else 3)
    if p.kind == 'vmem' and p.wide_data:
        if p.wide_data & c.dst: n = max(n, 2)
    if p.kind == 'salu' and 'm0' in p.dst and c.ldsdma: n = max(n, 1)
    return n

class Tok:
    def __init__(self, dst, smem=False): self.dst = dst; self.smem = smem

class Asm:
    def __init__(self):
        self.lines = []
        self.hist = []
        self.vm = []
        self.lg = []
        self.tail = []
        self.nops = 0
    def fork(self):
        o = Asm(); o.hist = list(self.hist); o.vm = list(self.vm); o.lg = list(self.lg)
        return o
    def raw(self, text):
        self.lines.append(text)
    def label(self, name):
        self.lines.append(name + ':')
    def comment(self, t):
        self.lines.append('    ; ' + t)
    def _push(self, ins):
        self.lines.append('    ' + ins.text)
        self.hist.append(ins)
        if len(self.hist) > 24: self.hist.pop(0)
    def wait(self, vm=None, lg=None):
        parts = []
        if vm is not None and len(self.vm) > vm:
            n = min(vm, 63); parts.append(f'vmcnt({n})'); self.vm = self.vm[len(self.vm) - n:] if n else []
        if lg is not None and len(self.lg) > lg:
            n = min(lg, 15)
            if any(t.smem for t in self.lg): n = 0
            parts.append(f'lgkmcnt({n})'); self.lg = self.lg[len(self.lg) - n:] if n else []
        if parts: self._push(Ins('s_waitcnt ' + ' '.join(parts)))
    def wait_tok(self, *toks):
        vm = None; lg = None
        for t in toks:
            if t in self.vm:
                n = len(self.vm) - 1 - self.vm.index(t); vm = n if vm is None else min(vm, n)
            if t in self.lg:
                n = len(self.lg) - 1 - self.lg.index(t); lg = n if lg is None else min(lg, n)
        self.wait(vm, lg)
    def __call__(self, text):
        ins = Ins(text)
        touch = ins.src | ins.dst
        toks = [t for t in self.vm + self.lg if t.dst & touch]
        if toks: self.wait_tok(*toks)
        need = 0; dist = 0
        for p in reversed(self.hist):
            need = max(need, need_ws(p, ins) - dist)
            dist += p.ws
            if dist >= 20: break
        if need > 0:
            self._push(Ins(f's_nop {need - 1}')); self.nops += need
        if ins.kind == 'vmem' and len(self.vm) >= 63:
            self.wait(vm=62)
        self._push(ins)
        tok = None
        if ins.kind == 'vmem':
            tok = Tok(ins.dst); self.vm.append(tok)
        elif ins.kind == 'ds':
            tok = Tok(ins.dst); self.lg.append(tok)
        elif ins.kind == 'smem':
            tok = Tok(ins.dst, True); self.lg.append(tok)
        return tok
    def text(self):
        return '\n'.join(self.lines + self.tail)

class Regs:
    def __init__(self, kind, lo, hi):
        self.kind = kind; self.free = list(range(lo, hi)); self.hw = lo
    def alloc(self, n=1, align=None):
        if align is None: align = 1 if n == 1 else (2 if self.kind != 's' else (4 if n >= 4 else 2))
        fs = set(self.free)
        for b in self.free:
            if b % align == 0 and all(b + i in fs for i in range(n)):
                for i in range(n): self.free.remove(b + i)
                self.hw = max(self.hw, b + n)
                return R(self.kind, b, n)
        raise RuntimeError(f'out of {self.kind} regs (need {n})')
    def release(self, *rs):
        for r in rs:
            for i in range(r.n):
                assert r.b + i not in self.free
                self.free.append(r.b + i)
        self.free.sort()
    def clone(self):
        return copy.deepcopy(self)

class R:
    def __init__(self, k, b, n): self.k = k; self.b = b; self.n = n
    def __str__(self):
        return f'{self.k}{self.b}' if self.n == 1 else f'{self.k}[{self.b}:{self.b + self.n - 1}]'
    def __format__(self, spec): return str(self)
    def __getitem__(self, i):
        if isinstance(i, slice):
            lo = i.start or 0; hi = i.stop if i.stop is not None else self.n
            assert 0 <= lo < hi <= self.n
            return R(self.k, self.b + lo, hi - lo)
        assert 0 <= i < self.n, (i, self.n)
        return R(self.k, self.b + i, 1)
    def sub(self, i, n): return self[i:i + n]
```

```python
import sys, struct
sys.path.insert(0, 'work')
from dsl import *

NAME = 'gated_mix__ssm_conv_s5__linear_attn_block__prompt_kernel'

WS_FLAG = 0x1000
WS_E = 0x10000
WS_KV1 = 0x40000
WS_KV2 = 0x140000
WS_PROF = 0x180000
WS_A = 0x200000
WS_SIZE = 0x800000
TAGINC = 0x9E3779B9
SLOT = 32768
LDS_F = 98304
CBLK = [65536, 81920, 0, 16384, 32768, 49152, 98304, 114688]
WO0, WO1 = 131072, 65536
MAXSPIN = 1 << 16

def f2u(x): return struct.unpack('<I', struct.pack('<f', x))[0]
def hx(x): return hex(x & 0xffffffff)

class Cfg:
    prof = False
    prefetch = True
    look = 12

def interleave(a, mfmas, fillers, per_gap=2, start=0):
    fi = 0
    def fill(n):
        nonlocal fi
        for _ in range(n):
            if fi < len(fillers):
                f = fillers[fi]; fi += 1
                f() if callable(f) else a(f)
    for i, m in enumerate(mfmas):
        a(m)
        if i >= start: fill(per_gap)
    fill(len(fillers))

def build(cfg):
    a = Asm()
    V = Regs('v', 1, 256); A = Regs('a', 0, 256); S = Regs('s', 3, 100)
    uid = [0]
    def lab(p):
        uid[0] += 1; return f'L_{p}_{uid[0]}'

    P0 = S.alloc(16, 4); P1 = S.alloc(16, 4)
    a('s_cmp_ge_u32 s2, 0x100')
    a('s_cbranch_scc1 L_end')
    a(f's_load_dwordx16 {P0}, s[0:1], 0x0')
    a(f's_load_dwordx16 {P1}, s[0:1], 0x40')
    sprof = [S.alloc(2) for _ in range(0)]
    ptr = lambda i: (P0 if i < 8 else P1).sub(2 * (i % 8), 2)
    sw, sc, shb, stj, sn, smt, stmp, stmp2, stag, scnt = [S.alloc() for _ in range(10)]
    stype = S.alloc()
    l = V.alloc(); vi = V.alloc(); vq = V.alloc(); t0 = V.alloc(); t1 = V.alloc(); t2 = V.alloc(); t3 = V.alloc()
    a(f'v_lshrrev_b32 {t0}, 6, v0')
    a(f'v_and_b32 {l}, 63, v0')
    a(f'v_readfirstlane_b32 {sw}, {t0}')
    a(f's_and_b32 {shb}, s2, 1')
    a(f's_bfe_u32 {sc}, s2, 0x20001')
    a(f's_bfe_u32 {stmp}, s2, 0x20003')
    a(f's_lshl2_add_u32 {sc}, {sc}, {stmp}')
    a(f's_lshr_b32 {sn}, s2, 5')
    a(f's_and_b32 {stype}, {sn}, 1')
    a(f's_lshr_b32 {stj}, {sn}, 1')
    a(f's_lshl2_add_u32 {stj}, {shb}, {stj}')
    a(f's_and_b32 {stmp}, {stmp}, 1')
    a(f's_xor_b32 {sn}, {sn}, {stmp}')
    a(f's_lshl2_add_u32 {smt}, {shb}, {sw}')
    a(f'v_and_b32 {vi}, 15, {l}')
    a(f'v_lshrrev_b32 {vq}, 4, {l}')

    r8 = V.alloc(); ch = V.alloc()
    a(f'v_lshrrev_b32 {r8}, 3, {l}')
    a(f'v_and_b32 {ch}, 7, {l}')
    vx = [V.alloc(), V.alloc()]
    a(f'v_lshrrev_b32 {t0}, 2, {r8}')
    a(f'v_lshlrev_b32 {t0}, 5, {t0}')
    a(f'v_and_b32 {t1}, 1, {r8}')
    a(f'v_lshl_add_u32 {t0}, {t1}, 4, {t0}')
    a(f'v_bfe_u32 {t1}, {r8}, 1, 1')
    a(f'v_add_u32 {t0}, {t0}, {t1}')
    a(f'v_lshrrev_b32 {t1}, 1, {r8}')
    a(f'v_xor_b32 {t1}, {t1}, {ch}')
    a(f'v_lshlrev_b32 {t1}, 4, {t1}')
    a(f'v_lshl_add_u32 {vx[0]}, {t0}, 10, {t1}')
    a(f'v_xor_b32 {t2}, 64, {vx[0]}')
    a(f'v_add_u32 {vx[1]}, {64 * 1024 - 1024}, {t2}')
    vb = [V.alloc(), V.alloc()]
    a(f'v_lshl_add_u32 {vb[0]}, {r8}, 10, {t1}')
    a(f'v_xor_b32 {t2}, 64, {vb[0]}')
    a(f'v_add_u32 {vb[1]}, {8 * 1024 - 1024}, {t2}')
    vwo = V.alloc()
    a(f'v_and_b32 {t1}, 6, {r8}')
    a(f'v_xor_b32 {t1}, {t1}, {ch}')
    a(f'v_lshlrev_b32 {t1}, 4, {t1}')
    a(f'v_lshl_add_u32 {vwo}, {r8}, 10, {t1}')
    vw = [V.alloc(), V.alloc()]
    a(f'v_and_b32 {t1}, 2, {r8}')
    a(f'v_xor_b32 {t1}, {t1}, {ch}')
    a(f'v_lshlrev_b32 {t1}, 4, {t1}')
    a(f'v_mul_u32_u24 {t2}, 0xc00, {r8}')
    a(f'v_add_u32 {vw[0]}, {t2}, {t1}')
    a(f'v_xor_b32 {t2}, 64, {vw[0]}')
    a(f'v_add_u32 {vw[1]}, {8 * 3072 - 1024}, {t2}')
    V.release(r8, ch)
    l16 = V.alloc()
    a(f'v_lshlrev_b32 {l16}, 4, {l}')

    sx, sb, slw = S.alloc(), S.alloc(), S.alloc()
    a(f's_lshl_b32 {sx}, {sc}, 17')
    a(f's_lshl_b32 {stmp}, {sw}, 12')
    a(f's_add_u32 {sx}, {sx}, {stmp}')
    a(f's_mov_b32 {slw}, {stmp}')

    rdA = [[V.alloc(), V.alloc()], [V.alloc(), V.alloc()]]
    a(f'v_lshrrev_b32 {t0}, 1, {vi}')
    a(f'v_xor_b32 {t0}, {t0}, {vq}')
    a(f'v_lshlrev_b32 {t0}, 4, {t0}')
    a(f'v_lshl_add_u32 {rdA[0][0]}, {vi}, 7, {t0}')
    a(f'v_xor_b32 {rdA[0][1]}, 64, {rdA[0][0]}')
    a(f'v_add_u32 {rdA[1][0]}, 0x10000, {rdA[0][0]}')
    a(f'v_add_u32 {rdA[1][1]}, 0x10000, {rdA[0][1]}')
    rdO = [[V.alloc(), V.alloc()], [V.alloc(), V.alloc()]]
    a(f's_lshl_b32 {stmp}, {smt}, 11')
    for h in range(2):
        for ks in range(2):
            a(f'v_add_u32 {rdO[h][ks]}, {stmp}, {rdA[h][ks]}')

    vxd = V.alloc(); vout = V.alloc(); vds = V.alloc()
    a(f's_lshl_b32 {stmp}, {sc}, 7')
    a(f's_lshl1_add_u32 {stmp}, {smt}, {stmp}')
    a(f'v_lshl_add_u32 {t0}, {vq}, 5, {stmp}')
    a(f's_lshl_b32 {stmp}, {sn}, 6')
    a(f'v_add_u32 {t1}, {stmp}, {vi}')
    a(f'v_lshlrev_b32 {vds}, 1, {t1}')
    a(f'v_lshl_add_u32 {vxd}, {t0}, 10, {vds}')
    a(f'v_lshlrev_b32 {vout}, 1, {vxd}')
    xd = V.alloc(16, 4); dsk = V.alloc(4)
    for r in range(16): a(f'v_mov_b32 {xd[r]}, 0')
    for r in range(4): a(f'v_mov_b32 {dsk[r]}, 0')

    def srd(p, size, adj=0):
        r = S.alloc(4, 4)
        if adj:
            a(f's_sub_u32 {r[0]}, {p[0]}, {adj}')
            a(f's_subb_u32 {r[1]}, {p[1]}, 0')
        else:
            a(f's_mov_b32 {r[0]}, {p[0]}')
            a(f's_mov_b32 {r[1]}, {p[1]}')
        a(f's_mov_b32 {r[2]}, {hx(size + adj)}')
        a(f's_mov_b32 {r[3]}, 0x20000')
        return r
    rX = srd(ptr(0), 2097152)
    s16k = S.alloc()
    a(f's_mov_b32 {s16k}, 0x4000')

    def x_dma(kb):
        so = S_tmpx
        return [f's_add_u32 m0, {slw}, {hx((kb % 3) * SLOT)}',
                f's_add_u32 {so}, {sx}, {kb * 128}',
                f'buffer_load_dwordx4 {vx[0]}, {rX}, {so} offen lds',
                f'buffer_load_dwordx4 {vx[1]}, {rX}, {so} offen offset:1024 lds',
                f'buffer_load_dwordx4 {vx[0]}, {rX}, {so} offen offset:2048 lds',
                f'buffer_load_dwordx4 {vx[1]}, {rX}, {so} offen offset:3072 lds']
    S_tmpx = S.alloc(); S_tmpw = S.alloc(); S_tmpw2 = S.alloc()

    def emit(lst):
        tok = None
        for f in lst:
            r = f() if callable(f) else a(f)
            tok = r or tok
        return tok

    def xd_loads(a):
        for j in range(4):
            for r in range(4):
                so = s16k if (r & 1) else '0'
                a(f'buffer_load_short_d16_hi {xd[4 * j + r]}, {vxd}, {rX}, {so} offen offset:{j * 32 + (r >> 1) * 1024}')

    a(f's_load_dword {stag}, {ptr(15)}, 0x0')
    rWS = srd(ptr(15), WS_SIZE)
    rOut = srd(ptr(13), 4194304)
    rCr = srd(ptr(5), 524288)
    rCi = srd(ptr(6), 524288, 2048)
    rWo = srd(ptr(11), 524288)
    rG = srd(ptr(12), 1024)
    sC, sWo = S.alloc(), S.alloc()
    a(f's_lshl2_add_u32 {sC}, {sn}, {sw}')
    a(f's_lshl_b32 {sC}, {sC}, 14')
    a(f's_lshl_b32 {sWo}, {sn}, 7')
    a(f's_lshl_b32 {stmp}, {sw}, 15')
    a(f's_add_u32 {sWo}, {sWo}, {stmp}')

    def c_dma(b):
        so = S_tmpw
        return [f's_add_u32 m0, {slw}, {hx(CBLK[b])}',
                f's_add_u32 {so}, {sC}, {b * 128}',
                f'buffer_load_dwordx4 {vb[0]}, {rCr}, {so} offen lds',
                f'buffer_load_dwordx4 {vb[1]}, {rCr}, {so} offen offset:1024 lds',
                f'buffer_load_dwordx4 {vb[0]}, {rCi}, {so} offen offset:2048 lds',
                f'buffer_load_dwordx4 {vb[1]}, {rCi}, {so} offen offset:3072 lds']
    def wo_dma(g):
        base = (WO0 if g < 2 else WO1) + (g & 1) * 16384
        out = [f's_add_u32 m0, {slw}, {hx(base)}']
        for j in range(4):
            so = S_tmpw if j % 2 == 0 else S_tmpw2
            out += [f's_add_u32 {so}, {sWo}, {hx(g * 131072 + j * 7168)}',
                    f'buffer_load_dwordx4 {vwo}, {rWo}, {so} offen offset:{j * 1024} lds']
        return out

    gate = A.alloc(64, 4)
    def gate_dma():
        return [f's_add_u32 m0, {slw}, {hx(LDS_F)}', 's_nop 0',
                f'buffer_load_dwordx4 {l16}, {rG}, 0 offen lds']
    def gate_reads(a):
        a(f'v_lshlrev_b32 {t0}, 4, {vq}')
        a(f'v_add_u32 {t0}, {slw}, {t0}')
        a(f'v_add_u32 {t0}, {hx(LDS_F)}, {t0}')
        for s in range(16):
            a(f'ds_read_b128 {gate.sub(4 * s, 4)}, {t0} offset:{s * 64}')

    def prefetch(a, V):
        pass

    a(f's_cmp_eq_u32 {stype}, 1')
    a('s_cbranch_scc1 L_typeX')

    def gather(a, loads, checks, name, masks=None):
        def issue():
            for x in loads: a(x)
        def cmps(e):
            for k, r in enumerate(checks):
                dst = 'vcc' if k == 0 else f'{sp_tmp}'
                e(f'v_cmp_ne_u32_e64 {dst}, {stag}, {r}')
                if masks: e(f's_and_b64 {dst}, {dst}, {masks[k]}')
                if k: e(f's_or_b64 vcc, vcc, {sp_tmp}')
        def check():
            slow = lab('slow_' + name); back = lab('back_' + name)
            cmps(a)
            a(f's_cbranch_vccnz {slow}')
            a.label(back)
            b = Asm()
            b.label(slow)
            b(f's_mov_b32 {scnt}, 0')
            b.label(slow + '_l')
            for x in loads: b(x)
            b(f's_add_u32 {scnt}, {scnt}, 1')
            b('s_waitcnt vmcnt(0)'); b.vm = []
            b(f's_cmp_ge_u32 {scnt}, {hx(MAXSPIN)}')
            b(f's_cbranch_scc1 {back}')
            cmps(b)
            b(f's_cbranch_vccnz {slow}_l')
            b(f's_branch {back}')
            a.tail += b.lines
        return issue, check
    sp_tmp = S.alloc(2)

    def phaseA(a, V, A, wdma, breads, mfmas, extra_reads, late_dma, bg):
        FA = [V.alloc(32, 4), V.alloc(32, 4)]
        FB = [V.alloc(8, 4), V.alloc(8, 4)]
        def reads(kb, ks):
            sl = (kb % 3) * SLOT; hi = sl >> 16; off = sl & 0xffff
            out = breads(kb, ks, FB[ks])
            out += [f'ds_read_b128 {FA[ks].sub(4 * mt, 4)}, {rdA[hi][ks]} offset:{off + mt * 2048}' for mt in range(8)]
            out += extra_reads(kb, ks)
            return out
        land = {}
        def track(kb, lst):
            def last():
                land[kb] = a(lst[-1])
            return lst[:-1] + [last]
        emit_a = lambda lst: [f() if callable(f) else a(f) for f in lst]
        emit_a(track(0, x_dma(0) + wdma(0)))
        gt = emit_a(gate_dma())[-1]
        pre_small(a)
        emit_a(track(1, x_dma(1) + wdma(1)))
        xd_loads(a)
        for j in range(4):
            a(f'global_load_short_d16_hi {dsk[j]}, {vds}, {ptr(8)} offset:{j * 32}')
        emit_a(track(2, x_dma(2) + wdma(2)))
        a.wait_tok(gt)
        a('s_barrier')
        emit_a(reads(0, 0))
        gate_reads(a)
        pend = []
        bgi = [0]
        def take_bg(n):
            out = bg[bgi[0]:bgi[0] + n]; bgi[0] += n; return out
        for kb in range(8):
            a.wait(lg=0)
            interleave(a, mfmas(kb, 0, FA[0], FB[0]), reads(kb, 1) + pend + take_bg(10))
            if kb < 7: a.wait_tok(land[kb + 1])
            a.wait(lg=0)
            a('s_barrier')
            if kb + 3 < 8: nxt = track(kb + 3, x_dma(kb + 3) + wdma(kb + 3))
            else: nxt = late_dma[kb - 5]
            half = len(nxt) // 2
            pend = nxt[half:]
            interleave(a, mfmas(kb, 1, FA[1], FB[1]), (reads(kb + 1, 0) if kb < 7 else []) + nxt[:half] + take_bg(10))
        emit_a(take_bg(len(bg)))
        V.release(*FA); V.release(*FB)
        return pend

    def sigmoid_g(a, accG):
        for r in range(4): a(f'v_mul_f32 {accG[r]}, {hx(f2u(-1.4426950408889634))}, {accG[r]}')
        for r in range(4): a(f'v_exp_f32 {accG[r]}, {accG[r]}')
        for r in range(4): a(f'v_add_f32 {accG[r]}, 1.0, {accG[r]}')
        for r in range(4): a(f'v_rcp_f32 {accG[r]}, {accG[r]}')

    def set_flag(a, V, part, last_store):
        a.wait_tok(last_store)
        a('s_barrier')
        skip = lab('noflag')
        a(f's_cmp_lg_u32 {sw}, 0')
        a(f's_cbranch_scc1 {skip}')
        a(f's_lshl_b32 {stmp}, {sc}, 8')
        a(f's_lshl2_add_u32 {stmp}, {stj}, {stmp}')
        a(f's_add_u32 {stmp}, {stmp}, {hx(WS_FLAG + part * 128)}')
        a(f'v_mov_b32 {t0}, 0')
        a(f'v_mov_b32 {t1}, {stag}')
        a('s_mov_b64 exec, 1')
        a.raw(f'    buffer_store_dword {t1}, {t0}, {rWS}, {stmp} offen sc1')
        a('s_mov_b64 exec, -1')
        a.label(skip)

    def phase2(a, V, A, accG, w2_tok):
        AF = A.alloc(192, 4)
        NB = 4
        BF = [V.alloc(16, 4) for _ in range(NB)]
        accB = V.alloc(16, 4)
        rdC = [[V.alloc() for _ in range(4)] for _ in range(2)]
        rdW = [V.alloc() for _ in range(4)]
        vfl = V.alloc(); fl = V.alloc(); fl2 = V.alloc()
        sA = S.alloc(); sF = S.alloc(); sA2 = S.alloc()
        a(f'v_and_b32 {vfl}, 7, {l}')
        a(f'v_lshlrev_b32 {vfl}, 2, {vfl}')
        a(f's_lshl_b32 {sF}, {sc}, 8')
        a(f's_add_u32 {sF}, {sF}, {hx(WS_FLAG)}')
        iss_h, chk_h = gather(a, [f'buffer_load_dword {fl}, {vfl}, {rWS}, {sF} offen sc1'], [fl], 'fh')
        iss_o, chk_o = gather(a, [f'buffer_load_dword {fl2}, {vfl}, {rWS}, {sF} offen offset:128 sc1'], [fl2], 'fo')
        iss_h()
        a(f'v_lshrrev_b32 {t0}, 1, {vi}')
        a(f'v_lshrrev_b32 {t1}, 1, {vq}')
        a(f'v_xor_b32 {t0}, {t0}, {t1}')
        a(f'v_lshlrev_b32 {t0}, 4, {t0}')
        a(f'v_lshl_add_u32 {t0}, {vi}, 7, {t0}')
        a(f'v_and_b32 {t1}, 1, {vq}')
        a(f'v_lshl_add_u32 {rdC[0][0]}, {t1}, 11, {t0}')
        for s in range(1, 4): a(f'v_xor_b32 {rdC[0][s]}, {32 * s}, {rdC[0][0]}')
        for s in range(4): a(f'v_add_u32 {rdC[1][s]}, 0x10000, {rdC[0][s]}')
        a(f'v_lshrrev_b32 {t0}, 2, {vi}')
        a(f'v_lshl_add_u32 {t0}, {vq}, 2, {t0}')
        a(f'v_and_b32 {t1}, 6, {t0}')
        a(f'v_bfe_u32 {t2}, {vi}, 1, 1')
        a(f'v_xor_b32 {t1}, {t1}, {t2}')
        a(f'v_lshlrev_b32 {t1}, 4, {t1}')
        a(f'v_lshl_add_u32 {t1}, {t0}, 7, {t1}')
        a(f'v_and_b32 {t2}, 1, {vi}')
        a(f'v_lshl_add_u32 {t1}, {t2}, 3, {t1}')
        a(f'v_add_u32 {rdW[0]}, {hx(WO0)}, {t1}')
        for j in range(1, 4): a(f'v_xor_b32 {rdW[j]}, {32 * j}, {rdW[0]}')
        for j in range(4):
            for r in range(4): a(f'v_mul_f32 {xd[4 * j + r]}, {dsk[j]}, {xd[4 * j + r]}')
        a(f's_lshl3_add_u32 {sA}, {sc}, {smt}')
        a(f's_mul_i32 {sA}, {sA}, {48 * 1024}')
        a(f's_add_u32 {sA}, {sA}, {hx(WS_A)}')
        def aload(s):
            out = []
            if s % 4 == 0: out.append(f's_add_u32 {sA2}, {sA}, {hx(s * 1024)}')
            out.append(f'buffer_load_dwordx4 {AF.sub(4 * s, 4)}, {l16}, {rWS}, {sA2} offen offset:{(s % 4) * 1024} sc1')
            return out
        def breads(s):
            buf = BF[s % NB]
            if s < 32:
                base = CBLK[s >> 2]; hi = base >> 16; off = base & 0xffff
                return [f'ds_read_b128 {buf.sub(4 * j, 4)}, {rdC[hi][s & 3]} offset:{off + j * 4096}' for j in range(4)]
            so = s - 32
            out = []
            if so == 8:
                out += [f'v_add_u32 {rdW[j]}, {hx(WO1 - WO0)}, {rdW[j]}' for j in range(4)]
            for j in range(4):
                for h in range(2):
                    out.append(f'ds_read_b64_tr_b16 {buf.sub(4 * j + 2 * h, 2)}, {rdW[j]} offset:{(so & 7) * 4096 + h * 2048}')
            return out
        chk_h()
        for s in range(cfg.look):
            for x in aload(s): a(x)
        a.wait_tok(w2_tok)
        a('s_barrier')
        LA = 2
        for s in range(LA):
            for x in breads(s): a(x)
        w2b = wo_dma(2) + wo_dma(3)
        w2b_tok = [None]
        omg = V.alloc(4, 2)
        for s in range(48):
            acc = xd if s < 32 else accB
            fill = []
            if s + LA < 48:
                if s + LA == 40:
                    def w():
                        a.wait_tok(w2b_tok[0]); a('s_barrier')
                    fill.append(w)
                fill += breads(s + LA)
            nl = s + cfg.look
            if nl == 24: fill.append(iss_o)
            if nl == 32: fill.append(chk_o)
            if nl < 48: fill += aload(nl)
            if s == 8:
                fill.append('s_barrier')
            if 8 <= s < 16:
                k = s - 8
                n = len(w2b)
                part = w2b[k * n // 8:(k + 1) * n // 8]
                if k == 7:
                    def last(x=part[-1]):
                        w2b_tok[0] = a(x)
                    part = part[:-1] + [last]
                fill += part
            if s == 36:
                for r in range(4): fill.append(f'v_sub_f32 {omg[r]}, 1.0, {accG[r]}')
                for j in range(4):
                    for h in range(2):
                        fill.append(f'v_pk_mul_f32 {xd.sub(4 * j + 2 * h, 2)}, {xd.sub(4 * j + 2 * h, 2)}, {accG.sub(2 * h, 2)}')
            m = []
            for j in range(4):
                c = '0' if s == 32 else acc.sub(4 * j, 4)
                m.append(f'v_mfma_f32_16x16x32_bf16 {acc.sub(4 * j, 4)}, {AF.sub(4 * s, 4)}, {BF[s % NB].sub(4 * j, 4)}, {c}')
            interleave(a, m, fill, per_gap=(len(fill) + 3) // 4)
        a(f's_mov_b32 {stmp}, 0x8000')
        for j in range(4):
            for h in range(2):
                a(f'v_pk_fma_f32 {xd.sub(4 * j + 2 * h, 2)}, {accB.sub(4 * j + 2 * h, 2)}, {omg.sub(2 * h, 2)}, {xd.sub(4 * j + 2 * h, 2)}')
            for r in range(4):
                so = stmp if (r & 1) else '0'
                a(f'buffer_store_dword {xd[4 * j + r]}, {vout}, {rOut}, {so} offen offset:{j * 64 + (r >> 1) * 2048}')
        a(f's_cmp_lg_u32 s2, 0xff')
        a(f's_cbranch_scc1 L_end')
        a(f's_cmp_lg_u32 {sw}, 0')
        a(f's_cbranch_scc1 L_end')
        a(f'v_mov_b32 {t0}, 0')
        a(f'v_mov_b32 {t1}, {stag}')
        a('s_mov_b64 exec, 1')
        a(f'buffer_store_dword {t1}, {t0}, {rWS}, 0 offen sc1')
        a('s_endpgm')

    ax = a.fork(); VX = V.clone(); AX = A.clone(); SX = S.clone()

    rBr = srd(ptr(3), 524288)
    rBi = srd(ptr(4), 524288, 2048)
    a(f's_lshl2_add_u32 {sb}, {stj}, {sw}')
    a(f's_lshl_b32 {sb}, {sb}, 14')
    def b_dma(kb):
        so = S_tmpw
        return [f's_add_u32 m0, {slw}, {hx((kb % 3) * SLOT + 16384)}',
                f's_add_u32 {so}, {sb}, {kb * 128}',
                f'buffer_load_dwordx4 {vb[0]}, {rBr}, {so} offen lds',
                f'buffer_load_dwordx4 {vb[1]}, {rBr}, {so} offen offset:1024 lds',
                f'buffer_load_dwordx4 {vb[0]}, {rBi}, {so} offen offset:2048 lds',
                f'buffer_load_dwordx4 {vb[1]}, {rBi}, {so} offen offset:3072 lds']
    rdB = [[V.alloc(), V.alloc()], [V.alloc(), V.alloc()]]
    for h in range(2):
        for ks in range(2):
            a(f'v_add_u32 {rdB[h][ks]}, {slw}, {rdA[h][ks]}')
    def y_breads(kb, ks, buf):
        sl = (kb % 3) * SLOT; hi = sl >> 16; off = (sl & 0xffff) + 16384
        return [f'ds_read_b128 {buf.sub(0, 4)}, {rdB[hi][ks]} offset:{off}',
                f'ds_read_b128 {buf.sub(4, 4)}, {rdB[hi][ks]} offset:{off + 2048}']
    FG = [A.alloc(4, 4), A.alloc(4, 4)]
    def y_extra(kb, ks):
        sl = (kb % 3) * SLOT; hi = sl >> 16; off = sl & 0xffff
        return [f'ds_read_b128 {FG[ks]}, {rdO[hi][ks]} offset:{off}']
    accR = V.alloc(32, 4); accI = V.alloc(32, 4); accG = V.alloc(4, 4)
    def y_mfmas(kb, ks, FA, FB):
        first = (kb == 0 and ks == 0)
        out = []
        for mt in range(8):
            for acc, b in ((accR, 0), (accI, 4)):
                c = '0' if first else acc.sub(4 * mt, 4)
                out.append(f'v_mfma_f32_16x16x32_bf16 {acc.sub(4 * mt, 4)}, {FA.sub(4 * mt, 4)}, {FB.sub(b, 4)}, {c}')
        c = '0' if first else accG
        out.append(f'v_mfma_f32_16x16x32_bf16 {accG}, {FG[ks]}, {gate.sub(4 * (2 * kb + ks), 4)}, {c}')
        return out
    Lam = V.alloc(2); dtv = V.alloc(); vp = V.alloc()
    L1 = V.alloc(2); L16 = V.alloc(2); L32 = V.alloc(2); L512 = V.alloc(2); Lq128 = V.alloc(2)
    K = V.alloc(2); KWr = V.alloc(2); KWi = V.alloc(2); ident = V.alloc(2)
    c0 = V.alloc(2); c1 = V.alloc(2); c2 = V.alloc(2)
    S.release(P0, P1)
    mq = [S.alloc(2) for _ in range(3)]
    modd, mhi = S.alloc(2), S.alloc(2)
    valid = [S.alloc(2) for _ in range(4)]
    vE = [V.alloc() for _ in range(4)]; vEst = V.alloc()
    def pre_small(a):
        a(f's_lshr_b32 {stmp}, {sb}, 9')
        a(f'v_lshl_add_u32 {vp}, {vi}, 1, {stmp}')
        a(f'v_mov_b32 {Lam[0]}, 0'); a(f'v_mov_b32 {Lam[1]}, 0'); a(f'v_mov_b32 {dtv}, 0')
        a(f'global_load_short_d16_hi {Lam[0]}, {vp}, {ptr(1)}')
        a(f'global_load_short_d16_hi {Lam[1]}, {vp}, {ptr(2)}')
        a(f'global_load_short_d16_hi {dtv}, {vp}, {ptr(7)}')
    def cmul(d, x, y):
        return [f'v_mul_f32 {d[0]}, {x[0]}, {y[0]}', f'v_mul_f32 {d[1]}, {x[0]}, {y[1]}',
                f'v_fma_f32 {d[0]}, -{x[1]}, {y[1]}, {d[0]}', f'v_fma_f32 {d[1]}, {x[1]}, {y[0]}, {d[1]}']
    def cfma(d, x, y, z):
        return [f'v_fma_f32 {d[0]}, {x[0]}, {y[0]}, {z[0]}', f'v_fma_f32 {d[1]}, {x[0]}, {y[1]}, {z[1]}',
                f'v_fma_f32 {d[0]}, -{x[1]}, {y[1]}, {d[0]}', f'v_fma_f32 {d[1]}, {x[1]}, {y[0]}, {d[1]}']
    def csel(d, x, m):
        return [f'v_cndmask_b32_e64 {d[0]}, 1.0, {x[0]}, {m}', f'v_cndmask_b32_e64 {d[1]}, 0, {x[1]}, {m}']
    LOG2E = hx(f2u(1.4426950408889634))
    bg = [f's_add_u32 {stag}, {stag}, {hx(TAGINC)}',
          f's_mov_b32 {mq[0][0]}, 0xffff0000', f's_mov_b32 {mq[0][1]}, 0',
          f's_mov_b32 {mq[1][0]}, 0', f's_mov_b32 {mq[1][1]}, 0xffff',
          f's_mov_b32 {mq[2][0]}, 0', f's_mov_b32 {mq[2][1]}, 0xffff0000',
          f's_mov_b32 {modd[0]}, 0xffff0000', f's_mov_b32 {modd[1]}, 0xffff0000',
          f's_mov_b32 {mhi[0]}, 0', f's_mov_b32 {mhi[1]}, -1',
          f'v_mul_f32 {dtv}, {LOG2E}, {dtv}', f'v_exp_f32 {dtv}, {dtv}',
          f'v_cvt_pk_bf16_f32 {dtv}, {dtv}, {dtv}', f'v_and_b32 {dtv}, 0xffff0000, {dtv}',
          f'v_mul_f32 {c0[0]}, {dtv}, {Lam[0]}', f'v_mul_f32 {c0[1]}, {dtv}, {Lam[1]}',
          f'v_mul_f32 {c0[0]}, {LOG2E}, {c0[0]}', f'v_mul_f32 {c0[1]}, 0.15915494, {c0[1]}',
          f'v_exp_f32 {c0[0]}, {c0[0]}', f'v_fract_f32 {c0[1]}, {c0[1]}',
          f'v_cos_f32 {L1[0]}, {c0[1]}', f'v_sin_f32 {L1[1]}, {c0[1]}',
          f'v_mul_f32 {L1[0]}, {c0[0]}, {L1[0]}', f'v_mul_f32 {L1[1]}, {c0[0]}, {L1[1]}',
          f'v_mul_f32 {c1[0]}, {Lam[0]}, {Lam[0]}', f'v_fma_f32 {c1[0]}, {Lam[1]}, {Lam[1]}, {c1[0]}',
          f'v_rcp_f32 {c1[0]}, {c1[0]}', f'v_add_f32 {c0[0]}, -1.0, {L1[0]}', f'v_add_f32 {c1[0]}, {c1[0]}, {c1[0]}',
          f'v_mul_f32 {K[0]}, {c0[0]}, {Lam[0]}', f'v_mul_f32 {K[1]}, {L1[1]}, {Lam[0]}',
          f'v_fma_f32 {K[0]}, {L1[1]}, {Lam[1]}, {K[0]}', f'v_fma_f32 {K[1]}, -{c0[0]}, {Lam[1]}, {K[1]}',
          f'v_mul_f32 {K[0]}, {c1[0]}, {K[0]}', f'v_mul_f32 {K[1]}, {c1[0]}, {K[1]}']
    bg += cmul(c0, L1, L1) + cmul(c1, c0, c0) + cmul(c0, c1, c1) + cmul(L16, c0, c0) + cmul(L32, L16, L16)
    bg += cmul(c0, L32, L32)
    bg += csel(c1, L32, modd) + csel(c2, c0, mhi) + cmul(Lam, c1, c2)
    bg += cmul(c1, c0, c0) + cmul(c0, c1, c1) + cmul(L512, c0, c0)
    bg += csel(c1, c1, modd) + csel(c0, c0, mhi) + cmul(Lq128, c1, c0)
    bg += cmul(c0, K, Lam) + cmul(c1, c0, L16)
    bg += [f'v_mov_b32 {KWr[0]}, {c0[0]}', f'v_mov_b32 {KWi[0]}, {c0[1]}', f'v_mov_b32 {KWr[1]}, {c1[0]}', f'v_mov_b32 {KWi[1]}, {c1[1]}']
    bg += [f'v_lshlrev_b32 {c0[0]}, 2, {vq}', f'v_sub_u32 {c0[0]}, {vi}, {c0[0]}',
           f'v_mov_b32 {c1[0]}, 0x3f80', f'v_mov_b32 {c1[1]}, 0x3f800000',
           f'v_cmp_eq_u32 vcc, 0, {c0[0]}', f'v_cndmask_b32 {ident[0]}, 0, {c1[0]}, vcc',
           f'v_cmp_eq_u32 vcc, 2, {c0[0]}', f'v_cndmask_b32 {ident[1]}, 0, {c1[0]}, vcc',
           f'v_cmp_eq_u32 vcc, 1, {c0[0]}', f'v_cndmask_b32 {ident[0]}, {ident[0]}, {c1[1]}, vcc',
           f'v_cmp_eq_u32 vcc, 3, {c0[0]}', f'v_cndmask_b32 {ident[1]}, {ident[1]}, {c1[1]}, vcc']
    bg += [f's_lshr_b32 {stmp2}, {sb}, 2', f's_add_u32 {stmp2}, {stmp2}, {hx(WS_E)}',
           f'v_lshl_add_u32 {c0[0]}, {vi}, 4, {stmp2}', f'v_mov_b32 {c0[1]}, {sc}',
           f'v_lshl_add_u32 {vEst}, {c0[1]}, 8, {c0[0]}', f'v_mov_b32 {c1[1]}, 0x7ffffff0']
    for k in range(4):
        bg += [f'v_add_u32 {c1[0]}, {4 * k + 1}, {vq}', f'v_cmp_le_u32_e64 {valid[k]}, {c1[0]}, {c0[1]}',
               f'v_sub_u32 {c1[0]}, {c0[1]}, {c1[0]}', f'v_lshl_add_u32 {c1[0]}, {c1[0]}, 8, {c0[0]}',
               f'v_cndmask_b32_e64 {vE[k]}, {c1[1]}, {c1[0]}, {valid[k]}']

    late = [c_dma(0) + c_dma(1), c_dma(2) + c_dma(3), c_dma(4) + c_dma(5)]
    pend = phaseA(a, V, A, b_dma, y_breads, y_mfmas, y_extra, late, bg)
    rest = pend + c_dma(6) + c_dma(7) + wo_dma(0) + wo_dma(1)
    ri = [0]
    w2tok = [None]
    def dma(n):
        for _ in range(n):
            if ri[0] < len(rest):
                f = rest[ri[0]]; ri[0] += 1
                r = f() if callable(f) else a(f)
                if r is not None: w2tok[0] = r
    st = [[V.alloc(2), V.alloc(2)], [V.alloc(2), V.alloc(2)]]
    u = lambda acc, s: acc.sub(2 * s, 2)
    sr, si = u(accR, 0), u(accI, 0)
    LO = 'op_sel_hi:[0,1,1]'; HI = 'op_sel:[1,0,0]'; NEG = ' neg_lo:[1,0,0] neg_hi:[1,0,0]'
    for s in range(1, 16):
        tr, ti = st[s & 1]
        a(f'v_pk_fma_f32 {tr}, {L1}, {sr}, {u(accR, s)} {LO}')
        a(f'v_pk_fma_f32 {ti}, {L1}, {si}, {u(accI, s)} {LO}')
        a(f'v_pk_fma_f32 {tr}, {L1}, {si}, {tr} {HI}{NEG}')
        a(f'v_pk_fma_f32 {ti}, {L1}, {sr}, {ti} {HI}')
        sr, si = tr, ti
        if s % 2 == 0: dma(1)
    eA = [sr[0], si[0]]; eB = [sr[1], si[1]]
    E = [V.alloc(2) for _ in range(4)]
    for x in cfma(E[0], L16, eA, eB): a(x)
    for k in range(2): a(f'v_mov_b32 {E[1][k]}, {E[0][k]}')
    for k in range(2): a(f'v_permlane16_swap_b32 {E[0][k]}, {E[1][k]}')
    for k in range(2):
        a(f'v_mov_b32 {E[2][k]}, {E[0][k]}'); a(f'v_mov_b32 {E[3][k]}, {E[1][k]}')
    for k in range(2):
        a(f'v_permlane32_swap_b32 {E[0][k]}, {E[2][k]}'); a(f'v_permlane32_swap_b32 {E[1][k]}, {E[3][k]}')
    G = V.alloc(4, 4)
    for x in cfma(E[1], L32, E[0], E[1]): a(x)
    for x in cfma(E[2], L32, E[1], E[2]): a(x)
    a(f'v_mov_b32 {G[2]}, {stag}'); a(f'v_mov_b32 {G[3]}, {stag}')
    for x in cfma(G, L32, E[2], E[3]): a(x)
    a('s_mov_b64 exec, 0xffff')
    a(f'buffer_store_dwordx4 {G}, {vEst}, {rWS}, 0 offen sc1')
    a('s_mov_b64 exec, -1')
    Z = [V.alloc(2), V.alloc(2)]; KZr = V.alloc(2); KZi = V.alloc(2)
    for k in range(2):
        a(f'v_cndmask_b32_e64 {Z[0][k]}, 0, {E[0][k]}, {mq[0]}')
        a(f'v_cndmask_b32_e64 {Z[0][k]}, {Z[0][k]}, {E[1][k]}, {mq[1]}')
        a(f'v_cndmask_b32_e64 {Z[0][k]}, {Z[0][k]}, {E[2][k]}, {mq[2]}')
    dma(2)
    for x in cfma(Z[1], L16, Z[0], eA): a(x)
    for k in range(2):
        for x in cmul([KZr[k], KZi[k]], K, Z[k]): a(x)
    dma(2)
    U2 = V.alloc(32, 4)
    for s in range(16):
        a(f'v_pk_mul_f32 {u(U2, s)}, {K}, {u(accR, s)} op_sel_hi:[0,1]')
        a(f'v_pk_fma_f32 {u(U2, s)}, {K}, {u(accI, s)}, {u(U2, s)} {HI}{NEG}')
        a(f'v_pk_mul_f32 {u(accI, s)}, {K}, {u(accI, s)} op_sel_hi:[0,1] neg_lo:[1,0] neg_hi:[1,0]')
        a(f'v_pk_fma_f32 {u(accI, s)}, {K}, {u(accR, s)}, {u(accI, s)} {HI}{NEG}')
        dma(1)
    sigmoid_g(a, accG)
    dma(100)
    EG = [V.alloc(4, 4) for _ in range(4)]
    iss, chk = gather(a, [f'buffer_load_dwordx4 {EG[k]}, {vE[k]}, {rWS}, 0 offen sc1' for k in range(4)],
                      [EG[k][3] for k in range(4)], 'E', masks=valid)
    iss(); chk()
    for k in (2, 1, 0):
        for x in cfma(EG[k], L512, EG[k + 1], EG[k]): a(x)
    H = E[0]; H2 = E[1]
    for x in cmul(H, Lq128, EG[0]): a(x)
    for sw_op in ('v_permlane16_swap_b32', 'v_permlane32_swap_b32'):
        for k in range(2): a(f'v_mov_b32 {H2[k]}, {H[k]}')
        for k in range(2): a(f'{sw_op} {H[k]}, {H2[k]}')
        for k in range(2): a(f'v_add_f32 {H[k]}, {H[k]}, {H2[k]}')
    hr, hi = st[0]
    a(f'v_pk_fma_f32 {hr}, {H}, {KWr}, {KZr} {LO}')
    a(f'v_pk_fma_f32 {hi}, {H}, {KWi}, {KZi} {LO} neg_lo:[1,0,1] neg_hi:[1,0,1]')
    a(f'v_pk_fma_f32 {hr}, {H}, {KWi}, {hr} {HI}{NEG}')
    a(f'v_pk_fma_f32 {hi}, {H}, {KWr}, {hi} {HI}{NEG}')
    sH = S.alloc()
    a(f's_mul_i32 {sH}, {sc}, {8 * 48 * 1024}')
    a(f's_lshr_b32 {stmp}, {sb}, 4')
    a(f's_add_u32 {sH}, {sH}, {stmp}')
    a(f's_add_u32 {sH}, {sH}, {hx(WS_A)}')
    V.release(accR)
    PR = [V.alloc(4, 4), V.alloc(4, 4)]; T = [V.alloc(8, 4), V.alloc(8, 4)]; F = [V.alloc(4, 4), V.alloc(4, 4)]
    last = None
    def pack_store(mt):
        t = T[mt & 1]; f = F[mt & 1]
        for k in range(4): a(f'v_cvt_pk_bf16_f32 {f[k]}, {t[2 * k]}, {t[2 * k + 1]}')
        a(f's_add_u32 {stmp}, {sH}, {hx(mt * 48 * 1024)}')
        a(f'v_permlane16_swap_b32 {f[0]}, {f[2]}')
        a(f'v_permlane16_swap_b32 {f[1]}, {f[3]}')
        return a(f'buffer_store_dwordx4 {f}, {l16}, {rWS}, {stmp} offen sc1')
    for mt in range(8):
        for s in (2 * mt, 2 * mt + 1):
            nr, ni = u(U2, s), u(accI, s)
            a(f'v_pk_fma_f32 {nr}, {L1}, {hr}, {nr} {LO}')
            a(f'v_pk_fma_f32 {ni}, {L1}, {hi}, {ni} {LO}')
            a(f'v_pk_fma_f32 {nr}, {L1}, {hi}, {nr} {HI}')
            a(f'v_pk_fma_f32 {ni}, {L1}, {hr}, {ni} {HI}{NEG}')
            hr, hi = nr, ni
        p = PR[mt & 1]; t = T[mt & 1]
        a(f'v_cvt_pk_bf16_f32 {p[0]}, {U2[4 * mt]}, {U2[4 * mt + 1]}')
        a(f'v_cvt_pk_bf16_f32 {p[1]}, {U2[4 * mt + 2]}, {U2[4 * mt + 3]}')
        a(f'v_cvt_pk_bf16_f32 {p[2]}, {accI[4 * mt]}, {accI[4 * mt + 1]}')
        a(f'v_cvt_pk_bf16_f32 {p[3]}, {accI[4 * mt + 2]}, {accI[4 * mt + 3]}')
        if mt > 0: pack_store(mt - 1)
        a(f'v_mfma_f32_16x16x16_bf16 {t.sub(0, 4)}, {p.sub(0, 2)}, {ident}, 0')
        a(f'v_mfma_f32_16x16x16_bf16 {t.sub(4, 4)}, {p.sub(2, 2)}, {ident}, 0')
    last = pack_store(7)
    set_flag(a, V, 0, last)
    V.release(accI, U2, *PR, *T, *F, *EG, *E, G, *Z, KZr, KZi, *st[0], *st[1])
    A.release(gate, *FG)
    phase2(a, V, A, accG, w2tok[0])
    ytext = a.text()
    vhw = V.hw; ahw = A.hw; shw = S.hw

    a = ax; V = VX; A = AX; S = SX
    a.label('L_typeX')
    rW = srd(ptr(10), 1572864)
    swk = S.alloc(); swq = S.alloc()
    a(f's_mul_i32 {swq}, {sw}, {16 * 3072}')
    a(f's_lshl_b32 {stmp}, {stj}, 7')
    a(f's_add_u32 {swk}, {swq}, {stmp}')
    a(f's_add_u32 {swq}, {swk}, {swq}')
    def kv_dma(kb):
        return [f's_add_u32 m0, {slw}, {hx((kb % 3) * SLOT + 16384)}',
                f's_add_u32 {S_tmpw}, {swk}, {hx(kb * 64 * 3072 + 1024)}',
                f's_add_u32 {S_tmpw2}, {swk}, {hx(kb * 64 * 3072)}',
                f'buffer_load_dwordx4 {vw[0]}, {rW}, {S_tmpw} offen lds',
                f'buffer_load_dwordx4 {vw[1]}, {rW}, {S_tmpw} offen offset:1024 lds',
                f'buffer_load_dwordx4 {vw[0]}, {rW}, {S_tmpw2} offen offset:2048 lds',
                f'buffer_load_dwordx4 {vw[1]}, {rW}, {S_tmpw2} offen offset:3072 lds']
    def q_dma(g):
        return [f's_add_u32 m0, {slw}, {hx(LDS_F + g * 16384)}',
                f's_add_u32 {S_tmpw}, {swq}, {hx(g * 128 * 3072)}',
                f's_add_u32 {S_tmpw2}, {swq}, {hx(g * 128 * 3072 + 16 * 3072 - 2048)}',
                f'buffer_load_dwordx4 {vw[0]}, {rW}, {S_tmpw} offen lds',
                f'buffer_load_dwordx4 {vw[1]}, {rW}, {S_tmpw} offen offset:1024 lds',
                f'buffer_load_dwordx4 {vw[0]}, {rW}, {S_tmpw2} offen offset:2048 lds',
                f'buffer_load_dwordx4 {vw[1]}, {rW}, {S_tmpw2} offen offset:3072 lds']
    rdK = [V.alloc(), V.alloc()]; rdQ = [V.alloc() for _ in range(4)]
    a(f'v_and_b32 {t0}, 1, {vq}')
    a(f'v_lshrrev_b32 {t1}, 2, {vi}')
    a(f'v_lshl_add_u32 {t1}, {t0}, 3, {t1}')
    a(f'v_lshrrev_b32 {t2}, 3, {vi}')
    a(f'v_lshl_add_u32 {t2}, {t0}, 1, {t2}')
    a(f'v_lshlrev_b32 {t2}, 1, {t2}')
    a(f'v_bfe_u32 {t3}, {vi}, 1, 1')
    a(f'v_xor_b32 {t2}, {t2}, {t3}')
    a(f'v_lshlrev_b32 {t2}, 4, {t2}')
    a(f'v_lshl_add_u32 {t2}, {t1}, 7, {t2}')
    a(f'v_and_b32 {t3}, 1, {vi}')
    a(f'v_lshl_add_u32 {t2}, {t3}, 3, {t2}')
    a(f'v_lshrrev_b32 {t3}, 1, {vq}')
    a(f's_lshl_b32 {stmp}, {sw}, 5')
    a(f'v_xor_b32 {t1}, {stmp}, {t2}')
    a(f'v_lshl_add_u32 {rdK[0]}, {t3}, 12, {t1}')
    a(f'v_add_u32 {rdK[1]}, 0x10000, {rdK[0]}')
    a(f'v_lshl_add_u32 {t2}, {t3}, 11, {t2}')
    a(f'v_add_u32 {rdQ[0]}, {hx(LDS_F)}, {t2}')
    for j in range(1, 4): a(f'v_xor_b32 {rdQ[j]}, {32 * j}, {rdQ[0]}')
    rdO2 = [[V.alloc(), V.alloc()], [V.alloc(), V.alloc()]]
    for h in range(2):
        for ks in range(2):
            a(f'v_xor_b32 {rdO2[h][ks]}, 0x2000, {rdO[h][ks]}')
    def x_breads(kb, ks, buf):
        sl = (kb % 3) * SLOT; hi = sl >> 16; off = (sl & 0xffff) + 16384 + ks * 8192
        return [f'ds_read_b64_tr_b16 {buf.sub(4 * m + 2 * h, 2)}, {rdK[hi]} offset:{off + m * 2048 + h * 512}'
                for m in range(2) for h in range(2)]
    kept = [A.alloc(64, 4), A.alloc(64, 4)]
    def x_extra(kb, ks):
        sl = (kb % 3) * SLOT; hi = sl >> 16; off = sl & 0xffff; s = 2 * kb + ks
        return [f'ds_read_b128 {kept[0].sub(4 * s, 4)}, {rdO[hi][ks]} offset:{off}',
                f'ds_read_b128 {kept[1].sub(4 * s, 4)}, {rdO2[hi][ks]} offset:{off}']
    accK = V.alloc(32, 4); accV = V.alloc(32, 4); accG = V.alloc(4, 4)
    def x_mfmas(kb, ks, FA, FB):
        first = (kb == 0 and ks == 0)
        out = []
        for mt in range(8):
            for acc, b, c0_ in ((accK, 0, '1.0'), (accV, 4, '0')):
                c = c0_ if first else acc.sub(4 * mt, 4)
                out.append(f'v_mfma_f32_16x16x32_bf16 {acc.sub(4 * mt, 4)}, {FA.sub(4 * mt, 4)}, {FB.sub(b, 4)}, {c}')
        return out
    def pre_small(a): pass
    cL = V.alloc(2); ones = V.alloc(4, 4); eps4 = V.alloc(4, 4)
    S.release(P0, P1)
    me = [S.alloc(2) for _ in range(3)]
    vg1 = V.alloc(); sKV1 = S.alloc(); sKV1g = S.alloc(); sKV2 = S.alloc(); sKV2g = S.alloc()
    bg = [f's_add_u32 {stag}, {stag}, {hx(TAGINC)}',
          f'v_mov_b32 {cL[0]}, {LOG2E}', f'v_mov_b32 {cL[1]}, {hx(f2u(1e-6))}']
    bg += [f'v_mov_b32 {ones[k]}, 0x3f803f80' for k in range(4)]
    bg += [f'v_mov_b32 {eps4[k]}, {hx(f2u(1e-6))}' for k in range(4)]
    for k in range(3):
        m = 0x11111111 << (k + 1)
        bg += [f's_mov_b32 {me[k][0]}, {hx(m)}', f's_mov_b32 {me[k][1]}, {hx(m)}']
    bg += [f's_lshl2_add_u32 {stmp2}, {stj}, {sw}',
           f's_lshl_b32 {sKV1g}, {stmp2}, 15', f's_add_u32 {sKV1g}, {sKV1g}, {hx(WS_KV1)}',
           f's_lshl_b32 {sKV1}, {sc}, 11', f's_add_u32 {sKV1}, {sKV1}, {sKV1g}',
           f's_lshl_b32 {sKV2}, {sc}, 6', f's_add_u32 {sKV1g}, {sKV1g}, {sKV2}',
           f's_lshl_b32 {stmp2}, {stmp2}, 10', f's_add_u32 {sKV2}, {sKV2}, {stmp2}', f's_add_u32 {sKV2}, {sKV2}, {hx(WS_KV2)}',
           f's_lshl_b32 {sKV2g}, {stj}, 12', f's_add_u32 {sKV2g}, {sKV2g}, {hx(WS_KV2)}',
           f'v_lshrrev_b32 {vg1}, 2, {l}', f'v_lshlrev_b32 {vg1}, 11, {vg1}', f'v_and_b32 {t3}, 48, {l16}', f'v_add_u32 {vg1}, {vg1}, {t3}']
    qtok = [None, None]
    def trackq(i, lst):
        def last(): qtok[i] = a(lst[-1])
        return lst[:-1] + [last]
    late = [trackq(0, q_dma(0) + q_dma(1)), trackq(1, q_dma(2) + q_dma(3)), c_dma(0) + c_dma(1)]
    pend = phaseA(a, V, A, kv_dma, x_breads, x_mfmas, x_extra, late, bg)
    rest = pend + c_dma(2) + c_dma(3) + c_dma(4) + c_dma(5)
    ri = [0]; w2tok = [None]
    def phi(acc, dst, tmp, every=0):
        for g in range(0, 32, 4):
            for h in (0, 2):
                a(f'v_pk_fma_f32 {tmp.sub(h, 2)}, {acc.sub(g + h, 2)}, {cL}, {cL} op_sel_hi:[1,0,0] neg_lo:[0,0,1] neg_hi:[0,0,1]')
            for r in range(4): a(f'v_exp_f32_e64 {tmp[r]}, {tmp[r]} clamp')
            for r in range(4): a(f'v_max_f32 {tmp[r]}, {tmp[r]}, {acc[g + r]}')
            for h in (0, 2):
                a(f'v_pk_add_f32 {tmp.sub(h, 2)}, {tmp.sub(h, 2)}, {cL} op_sel:[0,1]')
            for h in (0, 2):
                a(f'v_cvt_pk_bf16_f32 {dst[(g + h) // 2]}, {tmp[h]}, {tmp[h + 1]}')
            if every: dma(every)
    PK = V.alloc(16, 4); VV = V.alloc(16, 4); tmp = V.alloc(4, 4)
    G1 = V.alloc(4, 4); G2 = V.alloc(4, 4); ZZ = V.alloc(4, 4)
    phi(accK, PK, tmp, every=1)
    for k in range(16): a(f'v_cvt_pk_bf16_f32 {VV[k]}, {accV[2 * k]}, {accV[2 * k + 1]}')
    for uu in range(4):
        a(f'v_mfma_f32_16x16x32_bf16 {ZZ}, {PK.sub(4 * uu, 4)}, {ones}, {"0" if uu == 0 else ZZ}')
        a(f'v_mfma_f32_16x16x32_bf16 {G1}, {PK.sub(4 * uu, 4)}, {VV.sub(4 * uu, 4)}, {"0" if uu == 0 else G1}')
    a(f'v_mov_b32 {G2[2]}, {stag}'); a(f'v_mov_b32 {G2[3]}, {stag}')
    dma(2)
    a(f'v_cndmask_b32_e64 {G2[1]}, {ZZ[0]}, {ZZ[1]}, {me[0]}')
    a(f'v_cndmask_b32_e64 {G2[1]}, {G2[1]}, {ZZ[2]}, {me[1]}')
    a(f'v_cndmask_b32_e64 {G2[1]}, {G2[1]}, {ZZ[3]}, {me[2]}')
    a(f'v_mov_b32 {G2[0]}, {G1[3]}')
    a(f'v_mov_b32 {G1[3]}, {stag}')
    a(f'buffer_store_dwordx4 {G1}, {l16}, {rWS}, {sKV1} offen sc1')
    a(f'buffer_store_dwordx4 {G2}, {l16}, {rWS}, {sKV1} offen offset:1024 sc1')
    V.release(accK, accV, PK, VV)
    accQ = V.alloc(32, 4)
    QB = [V.alloc(16, 4) for _ in range(3)]
    R1 = V.alloc(4, 4); R2 = V.alloc(4, 4); R3 = V.alloc(4, 4); rt = V.alloc(5)
    def q_reads(s):
        return [f'ds_read_b64_tr_b16 {QB[s % 3].sub(4 * j + 2 * h, 2)}, {rdQ[j]} offset:{s * 4096 + h * 512}'
                for j in range(4) for h in range(2)]
    iss1, chk1 = gather(a, [f'buffer_load_dwordx4 {R1}, {vg1}, {rWS}, {sKV1g} offen sc1',
                            f'buffer_load_dwordx4 {R2}, {vg1}, {rWS}, {sKV1g} offen offset:1024 sc1'], [R1[3], R2[3]], 'kv1')
    vals = [R1[0], R1[1], R1[2], R2[0], R2[1]]
    red = []
    for ror in (4, 8):
        red += [f'v_add_f32_dpp {x}, {x}, {x} row_ror:{ror} row_mask:0xf bank_mask:0xf' for x in vals]
    for sw_op in ('v_permlane16_swap_b32', 'v_permlane32_swap_b32'):
        red += [f'v_mov_b32 {rt[k]}, {x}' for k, x in enumerate(vals)]
        red += [f'{sw_op} {x}, {rt[k]}' for k, x in enumerate(vals)]
        red += [f'v_add_f32 {x}, {x}, {rt[k]}' for k, x in enumerate(vals)]
    red += [f'v_cvt_pk_bf16_f32 {R3[0]}, {R1[0]}, {R1[1]}', f'v_cvt_pk_bf16_f32 {R3[1]}, {R1[2]}, {R2[0]}',
            f'v_mov_b32 {R3[2]}, {R2[1]}', f'v_mov_b32 {R3[3]}, {stag}']
    def pub2():
        a('s_mov_b64 exec, 0xf')
        a(f'buffer_store_dwordx4 {R3}, {l16}, {rWS}, {sKV2} offen sc1')
        a('s_mov_b64 exec, -1')
    red.append(pub2)
    a.wait_tok(qtok[1])
    a('s_barrier')
    for x in q_reads(0): a(x)
    redi = 0
    for s in range(16):
        fill = q_reads(s + 1) if s < 15 else []
        fill.append(lambda: dma(2))
        if s == 4: fill.append(iss1)
        if s == 8: fill.append(chk1)
        if s >= 8:
            fill += red[redi:redi + 9]; redi += 9
        m = []
        for j in range(4):
            for uu in range(2):
                acc = accQ.sub(16 * uu + 4 * j, 4)
                m.append(f'v_mfma_f32_16x16x32_bf16 {acc}, {QB[s % 3].sub(4 * j, 4)}, {kept[uu].sub(4 * s, 4)}, {"1.0" if s == 0 else acc}')
        m.append(f'v_mfma_f32_16x16x32_bf16 {accG}, {kept[0].sub(4 * s, 4)}, {gate.sub(4 * s, 4)}, {"0" if s == 0 else accG}')
        interleave(a, m, fill, per_gap=2)
    assert redi >= len(red)
    dma(100)
    a('s_barrier')
    rest = c_dma(6) + c_dma(7) + wo_dma(0) + wo_dma(1); ri[0] = 0
    V.release(*QB)
    PQ = V.alloc(16, 4)
    KV = [V.alloc(4, 4) for _ in range(4)]
    iss2, chk2 = gather(a, [f'buffer_load_dwordx4 {KV[j]}, {l16}, {rWS}, {sKV2g} offen offset:{j * 1024} sc1' for j in range(4)],
                        [KV[j][3] for j in range(4)], 'kv2')
    phi(accQ, PQ, tmp, every=2)
    iss2()
    sigmoid_g(a, accG)
    dma(100)
    chk2()
    for j in range(4):
        for k in range(4):
            a(f'v_mov_b32_dpp {tmp[k]}, {KV[j][2]} quad_perm:[{k},{k},{k},{k}] row_mask:0xf bank_mask:0xf')
        a(f'v_cvt_pk_bf16_f32 {KV[j][2]}, {tmp[0]}, {tmp[1]}')
        a(f'v_cvt_pk_bf16_f32 {KV[j][3]}, {tmp[2]}, {tmp[3]}')
    DEN = V.alloc(32, 4)
    for uu in range(2):
        for j in range(4):
            b = PQ.sub(8 * uu + 2 * j, 2)
            a(f'v_mfma_f32_16x16x16_bf16 {DEN.sub(16 * uu + 4 * j, 4)}, {KV[j].sub(2, 2)}, {b}, {eps4}')
            a(f'v_mfma_f32_16x16x16_bf16 {accQ.sub(16 * uu + 4 * j, 4)}, {KV[j].sub(0, 2)}, {b}, 0')
    sO = [S.alloc(), S.alloc()]
    a(f's_lshl3_add_u32 {sO[0]}, {sc}, {smt}')
    a(f's_xor_b32 {sO[1]}, {sO[0]}, 4')
    a(f's_lshl_b32 {stmp}, {stj}, 11')
    a(f's_add_u32 {stmp}, {stmp}, {hx(WS_A + 32 * 1024)}')
    for uu in range(2):
        a(f's_mul_i32 {sO[uu]}, {sO[uu]}, {48 * 1024}')
        a(f's_add_u32 {sO[uu]}, {sO[uu]}, {stmp}')
    last = None
    for uu in range(2):
        for j in range(4):
            d = DEN.sub(16 * uu + 4 * j, 4)
            a(f'v_rcp_f32 {d[0]}, {d[0]}')
        for j in range(4):
            d = DEN.sub(16 * uu + 4 * j, 4); nq = accQ.sub(16 * uu + 4 * j, 4)
            for h in (0, 2):
                a(f'v_pk_mul_f32 {nq.sub(h, 2)}, {nq.sub(h, 2)}, {d.sub(0, 2)} op_sel_hi:[1,0]')
            for h in (0, 2):
                a(f'v_cvt_pk_bf16_f32 {PQ[8 * uu + 2 * j + h // 2]}, {nq[h]}, {nq[h + 1]}')
            if j & 1:
                last = a(f'buffer_store_dwordx4 {PQ.sub(8 * uu + 2 * j - 2, 4)}, {l16}, {rWS}, {sO[uu]} offen offset:{(j >> 1) * 1024} sc1')
    set_flag(a, V, 1, last)
    V.release(accQ, DEN, PQ, *KV)
    A.release(gate, *kept)
    phase2(a, V, A, accG, w2tok[0])
    xtext = a.text()
    vhw = max(vhw, V.hw); ahw = max(ahw, A.hw); shw = max(shw, S.hw)

    hdr = open('gated_mix__ssm_conv_s5__linear_attn_block__prompt.s.ref').read().split('; Override launch')[0]
    out = hdr + f'''; @launch grid=(256,1,1) block=(256,1,1) lds=163840
.amdgcn_target "amdgcn-amd-amdhsa--gfx950"
.text
.globl {NAME}
.p2align 8
.type {NAME},@function
{NAME}:
{ytext}
{xtext}
L_end:
    s_endpgm
.section .rodata,"a"
.p2align 6
.amdhsa_kernel {NAME}
  .amdhsa_next_free_vgpr 512
  .amdhsa_next_free_sgpr 102
  .amdhsa_accum_offset 256
  .amdhsa_group_segment_fixed_size 0
  .amdhsa_kernarg_size 128
  .amdhsa_user_sgpr_count 2
  .amdhsa_user_sgpr_kernarg_segment_ptr 1
  .amdhsa_system_sgpr_workgroup_id_x 1
.end_amdhsa_kernel
'''
    print(f'vgpr hw {vhw} agpr hw {ahw} sgpr hw {shw}', file=sys.stderr)
    return out

if __name__ == '__main__':
    cfg = Cfg()
    outp = sys.argv[1] if len(sys.argv) > 1 else 'gated_mix__ssm_conv_s5__linear_attn_block__prompt.s'
    for kv in sys.argv[2:]:
        k, v = kv.split('='); setattr(cfg, k, eval(v))
    txt = build(cfg)
    open(outp, 'w').write(txt)
```

```python
import sys, struct
sys.path.insert(0, 'work')
from dsl import *

NAME = 'gated_mix__ssm_conv_s5__linear_attn_block__prompt_kernel'

WS_FLAG = 0x1000
WS_E = 0x10000
WS_KV1 = 0x40000
WS_KV2 = 0x140000
WS_PROF = 0x180000
WS_A = 0x200000
WS_SIZE = 0x800000
TAGINC = 0x9E3779B9
SLOT = 32768
LDS_F = 98304
CBLK = [65536, 81920, 0, 16384, 32768, 49152, 98304, 114688]
WO0, WO1 = 131072, 65536
MAXSPIN = 1 << 16

def f2u(x): return struct.unpack('<I', struct.pack('<f', x))[0]
def hx(x): return hex(x & 0xffffffff)

class Cfg:
    prof = False
    prefetch = True
    look = 12

def interleave(a, mfmas, fillers, per_gap=2, start=0):
    fi = 0
    def fill(n):
        nonlocal fi
        for _ in range(n):
            if fi < len(fillers):
                f = fillers[fi]; fi += 1
                f() if callable(f) else a(f)
    for i, m in enumerate(mfmas):
        a(m)
        if i >= start: fill(per_gap)
    fill(len(fillers))

def build(cfg):
    a = Asm()
    V = Regs('v', 1, 256); A = Regs('a', 0, 256); S = Regs('s', 3, 100)
    uid = [0]
    def lab(p):
        uid[0] += 1; return f'L_{p}_{uid[0]}'

    P0 = S.alloc(16, 4); P1 = S.alloc(16, 4)
    a('s_cmp_ge_u32 s2, 0x100')
    a('s_cbranch_scc1 L_end')
    a(f's_load_dwordx16 {P0}, s[0:1], 0x0')
    a(f's_load_dwordx16 {P1}, s[0:1], 0x40')
    if cfg.prof:
        sps = S.alloc(2); vprof = V.alloc()
    pstate = {'pend': None}
    def stamp(k):
        if not cfg.prof: return
        if pstate['pend'] is not None:
            a(f'v_writelane_b32 {vprof}, {sps[0]}, {pstate["pend"]}')
        pstate['pend'] = k
        if k is not None: a(f's_memtime {sps}')
    if cfg.prof:
        a(f'v_mov_b32 {vprof}, 0')
        a(f's_memrealtime {sps}')
        pstate['pend'] = 15
        stamp(0)
    ptr = lambda i: (P0 if i < 8 else P1).sub(2 * (i % 8), 2)
    sw, sc, shb, stj, sn, smt, stmp, stmp2, stag, scnt = [S.alloc() for _ in range(10)]
    stype = S.alloc()
    l = V.alloc(); vi = V.alloc(); vq = V.alloc(); t0 = V.alloc(); t1 = V.alloc(); t2 = V.alloc(); t3 = V.alloc()
    a(f'v_lshrrev_b32 {t0}, 6, v0')
    a(f'v_and_b32 {l}, 63, v0')
    a(f'v_readfirstlane_b32 {sw}, {t0}')
    a(f's_and_b32 {shb}, s2, 1')
    a(f's_bfe_u32 {sc}, s2, 0x20001')
    a(f's_bfe_u32 {stmp}, s2, 0x20003')
    a(f's_lshl2_add_u32 {sc}, {sc}, {stmp}')
    a(f's_lshr_b32 {sn}, s2, 5')
    a(f's_and_b32 {stype}, {sn}, 1')
    a(f's_lshr_b32 {stj}, {sn}, 1')
    a(f's_lshl2_add_u32 {stj}, {shb}, {stj}')
    a(f's_and_b32 {stmp}, {stmp}, 1')
    a(f's_xor_b32 {sn}, {sn}, {stmp}')
    a(f's_lshl2_add_u32 {smt}, {shb}, {sw}')
    a(f'v_and_b32 {vi}, 15, {l}')
    a(f'v_lshrrev_b32 {vq}, 4, {l}')

    r8 = V.alloc(); ch = V.alloc()
    a(f'v_lshrrev_b32 {r8}, 3, {l}')
    a(f'v_and_b32 {ch}, 7, {l}')
    vx = [V.alloc(), V.alloc()]
    a(f'v_lshrrev_b32 {t0}, 2, {r8}')
    a(f'v_lshlrev_b32 {t0}, 5, {t0}')
    a(f'v_and_b32 {t1}, 1, {r8}')
    a(f'v_lshl_add_u32 {t0}, {t1}, 4, {t0}')
    a(f'v_bfe_u32 {t1}, {r8}, 1, 1')
    a(f'v_add_u32 {t0}, {t0}, {t1}')
    a(f'v_lshrrev_b32 {t1}, 1, {r8}')
    a(f'v_xor_b32 {t1}, {t1}, {ch}')
    a(f'v_lshlrev_b32 {t1}, 4, {t1}')
    a(f'v_lshl_add_u32 {vx[0]}, {t0}, 10, {t1}')
    a(f'v_xor_b32 {t2}, 64, {vx[0]}')
    a(f'v_add_u32 {vx[1]}, {64 * 1024 - 1024}, {t2}')
    vb = [V.alloc(), V.alloc()]
    a(f'v_lshl_add_u32 {vb[0]}, {r8}, 10, {t1}')
    a(f'v_xor_b32 {t2}, 64, {vb[0]}')
    a(f'v_add_u32 {vb[1]}, {8 * 1024 - 1024}, {t2}')
    vwo = V.alloc()
    a(f'v_and_b32 {t1}, 6, {r8}')
    a(f'v_xor_b32 {t1}, {t1}, {ch}')
    a(f'v_lshlrev_b32 {t1}, 4, {t1}')
    a(f'v_lshl_add_u32 {vwo}, {r8}, 10, {t1}')
    vw = [V.alloc(), V.alloc()]
    a(f'v_and_b32 {t1}, 2, {r8}')
    a(f'v_xor_b32 {t1}, {t1}, {ch}')
    a(f'v_lshlrev_b32 {t1}, 4, {t1}')
    a(f'v_mul_u32_u24 {t2}, 0xc00, {r8}')
    a(f'v_add_u32 {vw[0]}, {t2}, {t1}')
    a(f'v_xor_b32 {t2}, 64, {vw[0]}')
    a(f'v_add_u32 {vw[1]}, {8 * 3072 - 1024}, {t2}')
    V.release(r8, ch)
    l16 = V.alloc()
    a(f'v_lshlrev_b32 {l16}, 4, {l}')

    sx, sb, slw = S.alloc(), S.alloc(), S.alloc()
    a(f's_lshl_b32 {sx}, {sc}, 17')
    a(f's_lshl_b32 {stmp}, {sw}, 12')
    a(f's_add_u32 {sx}, {sx}, {stmp}')
    a(f's_mov_b32 {slw}, {stmp}')

    rdA = [[V.alloc(), V.alloc()], [V.alloc(), V.alloc()]]
    a(f'v_lshrrev_b32 {t0}, 1, {vi}')
    a(f'v_xor_b32 {t0}, {t0}, {vq}')
    a(f'v_lshlrev_b32 {t0}, 4, {t0}')
    a(f'v_lshl_add_u32 {rdA[0][0]}, {vi}, 7, {t0}')
    a(f'v_xor_b32 {rdA[0][1]}, 64, {rdA[0][0]}')
    a(f'v_add_u32 {rdA[1][0]}, 0x10000, {rdA[0][0]}')
    a(f'v_add_u32 {rdA[1][1]}, 0x10000, {rdA[0][1]}')
    rdO = [[V.alloc(), V.alloc()], [V.alloc(), V.alloc()]]
    a(f's_lshl_b32 {stmp}, {smt}, 11')
    for h in range(2):
        for ks in range(2):
            a(f'v_add_u32 {rdO[h][ks]}, {stmp}, {rdA[h][ks]}')

    vxd = V.alloc(); vout = V.alloc(); vds = V.alloc()
    a(f's_lshl_b32 {stmp}, {sc}, 7')
    a(f's_lshl1_add_u32 {stmp}, {smt}, {stmp}')
    a(f'v_lshl_add_u32 {t0}, {vq}, 5, {stmp}')
    a(f's_lshl_b32 {stmp}, {sn}, 6')
    a(f'v_add_u32 {t1}, {stmp}, {vi}')
    a(f'v_lshlrev_b32 {vds}, 1, {t1}')
    a(f'v_lshl_add_u32 {vxd}, {t0}, 10, {vds}')
    a(f'v_lshlrev_b32 {vout}, 1, {vxd}')
    xd = V.alloc(16, 4); dsk = V.alloc(4)
    for r in range(16): a(f'v_mov_b32 {xd[r]}, 0')
    for r in range(4): a(f'v_mov_b32 {dsk[r]}, 0')

    def srd(p, size, adj=0):
        r = S.alloc(4, 4)
        if adj:
            a(f's_sub_u32 {r[0]}, {p[0]}, {adj}')
            a(f's_subb_u32 {r[1]}, {p[1]}, 0')
        else:
            a(f's_mov_b32 {r[0]}, {p[0]}')
            a(f's_mov_b32 {r[1]}, {p[1]}')
        a(f's_mov_b32 {r[2]}, {hx(size + adj)}')
        a(f's_mov_b32 {r[3]}, 0x20000')
        return r
    rX = srd(ptr(0), 2097152)
    s16k = S.alloc()
    a(f's_mov_b32 {s16k}, 0x4000')

    def x_dma(kb):
        so = S_tmpx
        return [f's_add_u32 m0, {slw}, {hx((kb % 3) * SLOT)}',
                f's_add_u32 {so}, {sx}, {kb * 128}',
                f'buffer_load_dwordx4 {vx[0]}, {rX}, {so} offen lds',
                f'buffer_load_dwordx4 {vx[1]}, {rX}, {so} offen offset:1024 lds',
                f'buffer_load_dwordx4 {vx[0]}, {rX}, {so} offen offset:2048 lds',
                f'buffer_load_dwordx4 {vx[1]}, {rX}, {so} offen offset:3072 lds']
    S_tmpx = S.alloc(); S_tmpw = S.alloc(); S_tmpw2 = S.alloc()

    def emit(lst):
        tok = None
        for f in lst:
            r = f() if callable(f) else a(f)
            tok = r or tok
        return tok

    def xd_loads(a):
        for j in range(4):
            for r in range(4):
                so = s16k if (r & 1) else '0'
                a(f'buffer_load_short_d16_hi {xd[4 * j + r]}, {vxd}, {rX}, {so} offen offset:{j * 32 + (r >> 1) * 1024}')

    a(f's_load_dword {stag}, {ptr(15)}, 0x0')
    rWS = srd(ptr(15), WS_SIZE)
    rOut = srd(ptr(13), 4194304)
    rCr = srd(ptr(5), 524288)
    rCi = srd(ptr(6), 524288, 2048)
    rWo = srd(ptr(11), 524288)
    rG = srd(ptr(12), 1024)
    sC, sWo = S.alloc(), S.alloc()
    a(f's_lshl2_add_u32 {sC}, {sn}, {sw}')
    a(f's_lshl_b32 {sC}, {sC}, 14')
    a(f's_lshl_b32 {sWo}, {sn}, 7')
    a(f's_lshl_b32 {stmp}, {sw}, 15')
    a(f's_add_u32 {sWo}, {sWo}, {stmp}')

    def c_dma(b):
        so = S_tmpw
        return [f's_add_u32 m0, {slw}, {hx(CBLK[b])}',
                f's_add_u32 {so}, {sC}, {b * 128}',
                f'buffer_load_dwordx4 {vb[0]}, {rCr}, {so} offen lds',
                f'buffer_load_dwordx4 {vb[1]}, {rCr}, {so} offen offset:1024 lds',
                f'buffer_load_dwordx4 {vb[0]}, {rCi}, {so} offen offset:2048 lds',
                f'buffer_load_dwordx4 {vb[1]}, {rCi}, {so} offen offset:3072 lds']
    def wo_dma(g):
        base = (WO0 if g < 2 else WO1) + (g & 1) * 16384
        out = [f's_add_u32 m0, {slw}, {hx(base)}']
        for j in range(4):
            so = S_tmpw if j % 2 == 0 else S_tmpw2
            out += [f's_add_u32 {so}, {sWo}, {hx(g * 131072 + j * 7168)}',
                    f'buffer_load_dwordx4 {vwo}, {rWo}, {so} offen offset:{j * 1024} lds']
        return out

    gate = A.alloc(64, 4)
    def gate_dma():
        return [f's_add_u32 m0, {slw}, {hx(LDS_F)}', 's_nop 0',
                f'buffer_load_dwordx4 {l16}, {rG}, 0 offen lds']
    def gate_reads(a):
        a(f'v_lshlrev_b32 {t0}, 4, {vq}')
        a(f'v_add_u32 {t0}, {slw}, {t0}')
        a(f'v_add_u32 {t0}, {hx(LDS_F)}, {t0}')
        for s in range(16):
            a(f'ds_read_b128 {gate.sub(4 * s, 4)}, {t0} offset:{s * 64}')

    def prefetch(a, V):
        pass

    a(f's_cmp_eq_u32 {stype}, 1')
    a('s_cbranch_scc1 L_typeX')

    def gather(a, loads, checks, name, masks=None):
        def issue():
            for x in loads: a(x)
        def cmps(e):
            for k, r in enumerate(checks):
                dst = 'vcc' if k == 0 else f'{sp_tmp}'
                e(f'v_cmp_ne_u32_e64 {dst}, {stag}, {r}')
                if masks: e(f's_and_b64 {dst}, {dst}, {masks[k]}')
                if k: e(f's_or_b64 vcc, vcc, {sp_tmp}')
        def check():
            slow = lab('slow_' + name); back = lab('back_' + name)
            cmps(a)
            a(f's_cbranch_vccnz {slow}')
            a.label(back)
            b = Asm()
            b.label(slow)
            b(f's_mov_b32 {scnt}, 0')
            b.label(slow + '_l')
            for x in loads: b(x)
            b(f's_add_u32 {scnt}, {scnt}, 1')
            b('s_waitcnt vmcnt(0)'); b.vm = []
            b(f's_cmp_ge_u32 {scnt}, {hx(MAXSPIN)}')
            b(f's_cbranch_scc1 {back}')
            cmps(b)
            b(f's_cbranch_vccnz {slow}_l')
            b(f's_branch {back}')
            a.tail += b.lines
        return issue, check
    sp_tmp = S.alloc(2)

    def phaseA(a, V, A, wdma, breads, mfmas, extra_reads, late_dma, bg):
        FA = [V.alloc(32, 4), V.alloc(32, 4)]
        FB = [V.alloc(8, 4), V.alloc(8, 4)]
        def reads(kb, ks):
            sl = (kb % 3) * SLOT; hi = sl >> 16; off = sl & 0xffff
            out = breads(kb, ks, FB[ks])
            out += [f'ds_read_b128 {FA[ks].sub(4 * mt, 4)}, {rdA[hi][ks]} offset:{off + mt * 2048}' for mt in range(8)]
            out += extra_reads(kb, ks)
            return out
        land = {}
        def track(kb, lst):
            def last():
                land[kb] = a(lst[-1])
            return lst[:-1] + [last]
        emit_a = lambda lst: [f() if callable(f) else a(f) for f in lst]
        emit_a(track(0, x_dma(0) + wdma(0)))
        gt = emit_a(gate_dma())[-1]
        pre_small(a)
        emit_a(track(1, x_dma(1) + wdma(1)))
        xd_loads(a)
        for j in range(4):
            a(f'global_load_short_d16_hi {dsk[j]}, {vds}, {ptr(8)} offset:{j * 32}')
        emit_a(track(2, x_dma(2) + wdma(2)))
        stamp(1)
        a.wait_tok(gt)
        a('s_barrier')
        stamp(2)
        emit_a(reads(0, 0))
        gate_reads(a)
        pend = []
        bgi = [0]
        def take_bg(n):
            out = bg[bgi[0]:bgi[0] + n]; bgi[0] += n; return out
        for kb in range(8):
            a.wait(lg=0)
            interleave(a, mfmas(kb, 0, FA[0], FB[0]), reads(kb, 1) + pend + take_bg(10))
            if kb < 7: a.wait_tok(land[kb + 1])
            a.wait(lg=0)
            a('s_barrier')
            if kb == 3: stamp(3)
            if kb + 3 < 8: nxt = track(kb + 3, x_dma(kb + 3) + wdma(kb + 3))
            else: nxt = late_dma[kb - 5]
            half = len(nxt) // 2
            pend = nxt[half:]
            interleave(a, mfmas(kb, 1, FA[1], FB[1]), (reads(kb + 1, 0) if kb < 7 else []) + nxt[:half] + take_bg(10))
        emit_a(take_bg(len(bg)))
        stamp(4)
        V.release(*FA); V.release(*FB)
        return pend

    def sigmoid_g(a, accG):
        for r in range(4): a(f'v_mul_f32 {accG[r]}, {hx(f2u(-1.4426950408889634))}, {accG[r]}')
        for r in range(4): a(f'v_exp_f32 {accG[r]}, {accG[r]}')
        for r in range(4): a(f'v_add_f32 {accG[r]}, 1.0, {accG[r]}')
        for r in range(4): a(f'v_rcp_f32 {accG[r]}, {accG[r]}')

    def set_flag(a, V, part, last_store):
        stamp(8)
        a.wait_tok(last_store)
        a('s_barrier')
        stamp(9)
        skip = lab('noflag')
        a(f's_cmp_lg_u32 {sw}, 0')
        a(f's_cbranch_scc1 {skip}')
        a(f's_lshl_b32 {stmp}, {sc}, 8')
        a(f's_lshl2_add_u32 {stmp}, {stj}, {stmp}')
        a(f's_add_u32 {stmp}, {stmp}, {hx(WS_FLAG + part * 128)}')
        a(f'v_mov_b32 {t0}, 0')
        a(f'v_mov_b32 {t1}, {stag}')
        a('s_mov_b64 exec, 1')
        a.raw(f'    buffer_store_dword {t1}, {t0}, {rWS}, {stmp} offen sc1')
        a('s_mov_b64 exec, -1')
        a.label(skip)

    def phase2(a, V, A, accG, w2_tok):
        AF = A.alloc(192, 4)
        NB = 4
        BF = [V.alloc(16, 4) for _ in range(NB)]
        accB = V.alloc(16, 4)
        rdC = [[V.alloc() for _ in range(4)] for _ in range(2)]
        rdW = [V.alloc() for _ in range(4)]
        vfl = V.alloc(); fl = V.alloc(); fl2 = V.alloc()
        sA = S.alloc(); sF = S.alloc(); sA2 = S.alloc()
        a(f'v_and_b32 {vfl}, 7, {l}')
        a(f'v_lshlrev_b32 {vfl}, 2, {vfl}')
        a(f's_lshl_b32 {sF}, {sc}, 8')
        a(f's_add_u32 {sF}, {sF}, {hx(WS_FLAG)}')
        iss_h, chk_h = gather(a, [f'buffer_load_dword {fl}, {vfl}, {rWS}, {sF} offen sc1'], [fl], 'fh')
        iss_o, chk_o = gather(a, [f'buffer_load_dword {fl2}, {vfl}, {rWS}, {sF} offen offset:128 sc1'], [fl2], 'fo')
        iss_h()
        a(f'v_lshrrev_b32 {t0}, 1, {vi}')
        a(f'v_lshrrev_b32 {t1}, 1, {vq}')
        a(f'v_xor_b32 {t0}, {t0}, {t1}')
        a(f'v_lshlrev_b32 {t0}, 4, {t0}')
        a(f'v_lshl_add_u32 {t0}, {vi}, 7, {t0}')
        a(f'v_and_b32 {t1}, 1, {vq}')
        a(f'v_lshl_add_u32 {rdC[0][0]}, {t1}, 11, {t0}')
        for s in range(1, 4): a(f'v_xor_b32 {rdC[0][s]}, {32 * s}, {rdC[0][0]}')
        for s in range(4): a(f'v_add_u32 {rdC[1][s]}, 0x10000, {rdC[0][s]}')
        a(f'v_lshrrev_b32 {t0}, 2, {vi}')
        a(f'v_lshl_add_u32 {t0}, {vq}, 2, {t0}')
        a(f'v_and_b32 {t1}, 6, {t0}')
        a(f'v_bfe_u32 {t2}, {vi}, 1, 1')
        a(f'v_xor_b32 {t1}, {t1}, {t2}')
        a(f'v_lshlrev_b32 {t1}, 4, {t1}')
        a(f'v_lshl_add_u32 {t1}, {t0}, 7, {t1}')
        a(f'v_and_b32 {t2}, 1, {vi}')
        a(f'v_lshl_add_u32 {t1}, {t2}, 3, {t1}')
        a(f'v_add_u32 {rdW[0]}, {hx(WO0)}, {t1}')
        for j in range(1, 4): a(f'v_xor_b32 {rdW[j]}, {32 * j}, {rdW[0]}')
        for j in range(4):
            for r in range(4): a(f'v_mul_f32 {xd[4 * j + r]}, {dsk[j]}, {xd[4 * j + r]}')
        a(f's_lshl3_add_u32 {sA}, {sc}, {smt}')
        a(f's_mul_i32 {sA}, {sA}, {48 * 1024}')
        a(f's_add_u32 {sA}, {sA}, {hx(WS_A)}')
        def aload(s):
            out = []
            if s % 4 == 0: out.append(f's_add_u32 {sA2}, {sA}, {hx(s * 1024)}')
            out.append(f'buffer_load_dwordx4 {AF.sub(4 * s, 4)}, {l16}, {rWS}, {sA2} offen offset:{(s % 4) * 1024} sc1')
            return out
        def breads(s):
            buf = BF[s % NB]
            if s < 32:
                base = CBLK[s >> 2]; hi = base >> 16; off = base & 0xffff
                return [f'ds_read_b128 {buf.sub(4 * j, 4)}, {rdC[hi][s & 3]} offset:{off + j * 4096}' for j in range(4)]
            so = s - 32
            out = []
            if so == 8:
                out += [f'v_add_u32 {rdW[j]}, {hx(WO1 - WO0)}, {rdW[j]}' for j in range(4)]
            for j in range(4):
                for h in range(2):
                    out.append(f'ds_read_b64_tr_b16 {buf.sub(4 * j + 2 * h, 2)}, {rdW[j]} offset:{(so & 7) * 4096 + h * 2048}')
            return out
        chk_h()
        stamp(10)
        for s in range(cfg.look):
            for x in aload(s): a(x)
        a.wait_tok(w2_tok)
        a('s_barrier')
        stamp(11)
        LA = 2
        for s in range(LA):
            for x in breads(s): a(x)
        w2b = wo_dma(2) + wo_dma(3)
        w2b_tok = [None]
        omg = V.alloc(4, 2)
        for s in range(48):
            acc = xd if s < 32 else accB
            if s == 32: stamp(12)
            fill = []
            if s + LA < 48:
                if s + LA == 40:
                    def w():
                        a.wait_tok(w2b_tok[0]); a('s_barrier')
                    fill.append(w)
                fill += breads(s + LA)
            nl = s + cfg.look
            if nl == 24: fill.append(iss_o)
            if nl == 32: fill.append(chk_o)
            if nl < 48: fill += aload(nl)
            if s == 8:
                fill.append('s_barrier')
            if 8 <= s < 16:
                k = s - 8
                n = len(w2b)
                part = w2b[k * n // 8:(k + 1) * n // 8]
                if k == 7:
                    def last(x=part[-1]):
                        w2b_tok[0] = a(x)
                    part = part[:-1] + [last]
                fill += part
            if s == 36:
                for r in range(4): fill.append(f'v_sub_f32 {omg[r]}, 1.0, {accG[r]}')
                for j in range(4):
                    for h in range(2):
                        fill.append(f'v_pk_mul_f32 {xd.sub(4 * j + 2 * h, 2)}, {xd.sub(4 * j + 2 * h, 2)}, {accG.sub(2 * h, 2)}')
            m = []
            for j in range(4):
                c = '0' if s == 32 else acc.sub(4 * j, 4)
                m.append(f'v_mfma_f32_16x16x32_bf16 {acc.sub(4 * j, 4)}, {AF.sub(4 * s, 4)}, {BF[s % NB].sub(4 * j, 4)}, {c}')
            interleave(a, m, fill, per_gap=(len(fill) + 3) // 4)
        stamp(13)
        a(f's_mov_b32 {stmp}, 0x8000')
        for j in range(4):
            for h in range(2):
                a(f'v_pk_fma_f32 {xd.sub(4 * j + 2 * h, 2)}, {accB.sub(4 * j + 2 * h, 2)}, {omg.sub(2 * h, 2)}, {xd.sub(4 * j + 2 * h, 2)}')
            for r in range(4):
                so = stmp if (r & 1) else '0'
                a(f'buffer_store_dword {xd[4 * j + r]}, {vout}, {rOut}, {so} offen offset:{j * 64 + (r >> 1) * 2048}')
        if cfg.prof:
            a.wait(vm=0)
            stamp(14); stamp(None)
            a(f's_lshl2_add_u32 {stmp}, s2, {sw}')
            a(f's_lshl_b32 {stmp}, {stmp}, 6')
            a(f's_add_u32 {stmp}, {stmp}, {hx(WS_PROF)}')
            a(f'v_lshlrev_b32 {t0}, 2, {l}')
            a('s_mov_b64 exec, 0xffff')
            a(f'buffer_store_dword {vprof}, {t0}, {rWS}, {stmp} offen')
            a('s_mov_b64 exec, -1')
        a(f's_cmp_lg_u32 s2, 0xff')
        a(f's_cbranch_scc1 L_end')
        a(f's_cmp_lg_u32 {sw}, 0')
        a(f's_cbranch_scc1 L_end')
        a(f'v_mov_b32 {t0}, 0')
        a(f'v_mov_b32 {t1}, {stag}')
        a('s_mov_b64 exec, 1')
        a(f'buffer_store_dword {t1}, {t0}, {rWS}, 0 offen sc1')
        a('s_endpgm')

    pend_fork = pstate['pend']
    ax = a.fork(); VX = V.clone(); AX = A.clone(); SX = S.clone()

    rBr = srd(ptr(3), 524288)
    rBi = srd(ptr(4), 524288, 2048)
    a(f's_lshl2_add_u32 {sb}, {stj}, {sw}')
    a(f's_lshl_b32 {sb}, {sb}, 14')
    def b_dma(kb):
        so = S_tmpw
        return [f's_add_u32 m0, {slw}, {hx((kb % 3) * SLOT + 16384)}',
                f's_add_u32 {so}, {sb}, {kb * 128}',
                f'buffer_load_dwordx4 {vb[0]}, {rBr}, {so} offen lds',
                f'buffer_load_dwordx4 {vb[1]}, {rBr}, {so} offen offset:1024 lds',
                f'buffer_load_dwordx4 {vb[0]}, {rBi}, {so} offen offset:2048 lds',
                f'buffer_load_dwordx4 {vb[1]}, {rBi}, {so} offen offset:3072 lds']
    rdB = [[V.alloc(), V.alloc()], [V.alloc(), V.alloc()]]
    for h in range(2):
        for ks in range(2):
            a(f'v_add_u32 {rdB[h][ks]}, {slw}, {rdA[h][ks]}')
    def y_breads(kb, ks, buf):
        sl = (kb % 3) * SLOT; hi = sl >> 16; off = (sl & 0xffff) + 16384
        return [f'ds_read_b128 {buf.sub(0, 4)}, {rdB[hi][ks]} offset:{off}',
                f'ds_read_b128 {buf.sub(4, 4)}, {rdB[hi][ks]} offset:{off + 2048}']
    FG = [A.alloc(4, 4), A.alloc(4, 4)]
    def y_extra(kb, ks):
        sl = (kb % 3) * SLOT; hi = sl >> 16; off = sl & 0xffff
        return [f'ds_read_b128 {FG[ks]}, {rdO[hi][ks]} offset:{off}']
    accR = V.alloc(32, 4); accI = V.alloc(32, 4); accG = V.alloc(4, 4)
    def y_mfmas(kb, ks, FA, FB):
        first = (kb == 0 and ks == 0)
        out = []
        for mt in range(8):
            for acc, b in ((accR, 0), (accI, 4)):
                c = '0' if first else acc.sub(4 * mt, 4)
                out.append(f'v_mfma_f32_16x16x32_bf16 {acc.sub(4 * mt, 4)}, {FA.sub(4 * mt, 4)}, {FB.sub(b, 4)}, {c}')
        c = '0' if first else accG
        out.append(f'v_mfma_f32_16x16x32_bf16 {accG}, {FG[ks]}, {gate.sub(4 * (2 * kb + ks), 4)}, {c}')
        return out
    Lam = V.alloc(2); dtv = V.alloc(); vp = V.alloc()
    L1 = V.alloc(2); L16 = V.alloc(2); L32 = V.alloc(2); L512 = V.alloc(2); Lq128 = V.alloc(2)
    K = V.alloc(2); KWr = V.alloc(2); KWi = V.alloc(2); ident = V.alloc(2)
    c0 = V.alloc(2); c1 = V.alloc(2); c2 = V.alloc(2)
    S.release(P0, P1)
    mq = [S.alloc(2) for _ in range(3)]
    modd, mhi = S.alloc(2), S.alloc(2)
    valid = [S.alloc(2) for _ in range(4)]
    vE = [V.alloc() for _ in range(4)]; vEst = V.alloc()
    def pre_small(a):
        a(f's_lshr_b32 {stmp}, {sb}, 9')
        a(f'v_lshl_add_u32 {vp}, {vi}, 1, {stmp}')
        a(f'v_mov_b32 {Lam[0]}, 0'); a(f'v_mov_b32 {Lam[1]}, 0'); a(f'v_mov_b32 {dtv}, 0')
        a(f'global_load_short_d16_hi {Lam[0]}, {vp}, {ptr(1)}')
        a(f'global_load_short_d16_hi {Lam[1]}, {vp}, {ptr(2)}')
        a(f'global_load_short_d16_hi {dtv}, {vp}, {ptr(7)}')
    def cmul(d, x, y):
        return [f'v_mul_f32 {d[0]}, {x[0]}, {y[0]}', f'v_mul_f32 {d[1]}, {x[0]}, {y[1]}',
                f'v_fma_f32 {d[0]}, -{x[1]}, {y[1]}, {d[0]}', f'v_fma_f32 {d[1]}, {x[1]}, {y[0]}, {d[1]}']
    def cfma(d, x, y, z):
        return [f'v_fma_f32 {d[0]}, {x[0]}, {y[0]}, {z[0]}', f'v_fma_f32 {d[1]}, {x[0]}, {y[1]}, {z[1]}',
                f'v_fma_f32 {d[0]}, -{x[1]}, {y[1]}, {d[0]}', f'v_fma_f32 {d[1]}, {x[1]}, {y[0]}, {d[1]}']
    def csel(d, x, m):
        return [f'v_cndmask_b32_e64 {d[0]}, 1.0, {x[0]}, {m}', f'v_cndmask_b32_e64 {d[1]}, 0, {x[1]}, {m}']
    LOG2E = hx(f2u(1.4426950408889634))
    bg = [f's_add_u32 {stag}, {stag}, {hx(TAGINC)}',
          f's_mov_b32 {mq[0][0]}, 0xffff0000', f's_mov_b32 {mq[0][1]}, 0',
          f's_mov_b32 {mq[1][0]}, 0', f's_mov_b32 {mq[1][1]}, 0xffff',
          f's_mov_b32 {mq[2][0]}, 0', f's_mov_b32 {mq[2][1]}, 0xffff0000',
          f's_mov_b32 {modd[0]}, 0xffff0000', f's_mov_b32 {modd[1]}, 0xffff0000',
          f's_mov_b32 {mhi[0]}, 0', f's_mov_b32 {mhi[1]}, -1',
          f'v_mul_f32 {dtv}, {LOG2E}, {dtv}', f'v_exp_f32 {dtv}, {dtv}',
          f'v_cvt_pk_bf16_f32 {dtv}, {dtv}, {dtv}', f'v_and_b32 {dtv}, 0xffff0000, {dtv}',
          f'v_mul_f32 {c0[0]}, {dtv}, {Lam[0]}', f'v_mul_f32 {c0[1]}, {dtv}, {Lam[1]}',
          f'v_mul_f32 {c0[0]}, {LOG2E}, {c0[0]}', f'v_mul_f32 {c0[1]}, 0.15915494, {c0[1]}',
          f'v_exp_f32 {c0[0]}, {c0[0]}', f'v_fract_f32 {c0[1]}, {c0[1]}',
          f'v_cos_f32 {L1[0]}, {c0[1]}', f'v_sin_f32 {L1[1]}, {c0[1]}',
          f'v_mul_f32 {L1[0]}, {c0[0]}, {L1[0]}', f'v_mul_f32 {L1[1]}, {c0[0]}, {L1[1]}',
          f'v_mul_f32 {c1[0]}, {Lam[0]}, {Lam[0]}', f'v_fma_f32 {c1[0]}, {Lam[1]}, {Lam[1]}, {c1[0]}',
          f'v_rcp_f32 {c1[0]}, {c1[0]}', f'v_add_f32 {c0[0]}, -1.0, {L1[0]}', f'v_add_f32 {c1[0]}, {c1[0]}, {c1[0]}',
          f'v_mul_f32 {K[0]}, {c0[0]}, {Lam[0]}', f'v_mul_f32 {K[1]}, {L1[1]}, {Lam[0]}',
          f'v_fma_f32 {K[0]}, {L1[1]}, {Lam[1]}, {K[0]}', f'v_fma_f32 {K[1]}, -{c0[0]}, {Lam[1]}, {K[1]}',
          f'v_mul_f32 {K[0]}, {c1[0]}, {K[0]}', f'v_mul_f32 {K[1]}, {c1[0]}, {K[1]}']
    bg += cmul(c0, L1, L1) + cmul(c1, c0, c0) + cmul(c0, c1, c1) + cmul(L16, c0, c0) + cmul(L32, L16, L16)
    bg += cmul(c0, L32, L32)
    bg += csel(c1, L32, modd) + csel(c2, c0, mhi) + cmul(Lam, c1, c2)
    bg += cmul(c1, c0, c0) + cmul(c0, c1, c1) + cmul(L512, c0, c0)
    bg += csel(c1, c1, modd) + csel(c0, c0, mhi) + cmul(Lq128, c1, c0)
    bg += cmul(c0, K, Lam) + cmul(c1, c0, L16)
    bg += [f'v_mov_b32 {KWr[0]}, {c0[0]}', f'v_mov_b32 {KWi[0]}, {c0[1]}', f'v_mov_b32 {KWr[1]}, {c1[0]}', f'v_mov_b32 {KWi[1]}, {c1[1]}']
    bg += [f'v_lshlrev_b32 {c0[0]}, 2, {vq}', f'v_sub_u32 {c0[0]}, {vi}, {c0[0]}',
           f'v_mov_b32 {c1[0]}, 0x3f80', f'v_mov_b32 {c1[1]}, 0x3f800000',
           f'v_cmp_eq_u32 vcc, 0, {c0[0]}', f'v_cndmask_b32 {ident[0]}, 0, {c1[0]}, vcc',
           f'v_cmp_eq_u32 vcc, 2, {c0[0]}', f'v_cndmask_b32 {ident[1]}, 0, {c1[0]}, vcc',
           f'v_cmp_eq_u32 vcc, 1, {c0[0]}', f'v_cndmask_b32 {ident[0]}, {ident[0]}, {c1[1]}, vcc',
           f'v_cmp_eq_u32 vcc, 3, {c0[0]}', f'v_cndmask_b32 {ident[1]}, {ident[1]}, {c1[1]}, vcc']
    bg += [f's_lshr_b32 {stmp2}, {sb}, 2', f's_add_u32 {stmp2}, {stmp2}, {hx(WS_E)}',
           f'v_lshl_add_u32 {c0[0]}, {vi}, 4, {stmp2}', f'v_mov_b32 {c0[1]}, {sc}',
           f'v_lshl_add_u32 {vEst}, {c0[1]}, 8, {c0[0]}', f'v_mov_b32 {c1[1]}, 0x7ffffff0']
    for k in range(4):
        bg += [f'v_add_u32 {c1[0]}, {4 * k + 1}, {vq}', f'v_cmp_le_u32_e64 {valid[k]}, {c1[0]}, {c0[1]}',
               f'v_sub_u32 {c1[0]}, {c0[1]}, {c1[0]}', f'v_lshl_add_u32 {c1[0]}, {c1[0]}, 8, {c0[0]}',
               f'v_cndmask_b32_e64 {vE[k]}, {c1[1]}, {c1[0]}, {valid[k]}']

    late = [c_dma(0) + c_dma(1), c_dma(2) + c_dma(3), c_dma(4) + c_dma(5)]
    pend = phaseA(a, V, A, b_dma, y_breads, y_mfmas, y_extra, late, bg)
    rest = pend + c_dma(6) + c_dma(7) + wo_dma(0) + wo_dma(1)
    ri = [0]
    w2tok = [None]
    def dma(n):
        for _ in range(n):
            if ri[0] < len(rest):
                f = rest[ri[0]]; ri[0] += 1
                r = f() if callable(f) else a(f)
                if r is not None: w2tok[0] = r
    st = [[V.alloc(2), V.alloc(2)], [V.alloc(2), V.alloc(2)]]
    u = lambda acc, s: acc.sub(2 * s, 2)
    sr, si = u(accR, 0), u(accI, 0)
    LO = 'op_sel_hi:[0,1,1]'; HI = 'op_sel:[1,0,0]'; NEG = ' neg_lo:[1,0,0] neg_hi:[1,0,0]'
    for s in range(1, 16):
        tr, ti = st[s & 1]
        a(f'v_pk_fma_f32 {tr}, {L1}, {sr}, {u(accR, s)} {LO}')
        a(f'v_pk_fma_f32 {ti}, {L1}, {si}, {u(accI, s)} {LO}')
        a(f'v_pk_fma_f32 {tr}, {L1}, {si}, {tr} {HI}{NEG}')
        a(f'v_pk_fma_f32 {ti}, {L1}, {sr}, {ti} {HI}')
        sr, si = tr, ti
        if s % 2 == 0: dma(1)
    eA = [sr[0], si[0]]; eB = [sr[1], si[1]]
    E = [V.alloc(2) for _ in range(4)]
    for x in cfma(E[0], L16, eA, eB): a(x)
    for k in range(2): a(f'v_mov_b32 {E[1][k]}, {E[0][k]}')
    for k in range(2): a(f'v_permlane16_swap_b32 {E[0][k]}, {E[1][k]}')
    for k in range(2):
        a(f'v_mov_b32 {E[2][k]}, {E[0][k]}'); a(f'v_mov_b32 {E[3][k]}, {E[1][k]}')
    for k in range(2):
        a(f'v_permlane32_swap_b32 {E[0][k]}, {E[2][k]}'); a(f'v_permlane32_swap_b32 {E[1][k]}, {E[3][k]}')
    G = V.alloc(4, 4)
    for x in cfma(E[1], L32, E[0], E[1]): a(x)
    for x in cfma(E[2], L32, E[1], E[2]): a(x)
    a(f'v_mov_b32 {G[2]}, {stag}'); a(f'v_mov_b32 {G[3]}, {stag}')
    for x in cfma(G, L32, E[2], E[3]): a(x)
    a('s_mov_b64 exec, 0xffff')
    a(f'buffer_store_dwordx4 {G}, {vEst}, {rWS}, 0 offen sc1')
    a('s_mov_b64 exec, -1')
    stamp(5)
    Z = [V.alloc(2), V.alloc(2)]; KZr = V.alloc(2); KZi = V.alloc(2)
    for k in range(2):
        a(f'v_cndmask_b32_e64 {Z[0][k]}, 0, {E[0][k]}, {mq[0]}')
        a(f'v_cndmask_b32_e64 {Z[0][k]}, {Z[0][k]}, {E[1][k]}, {mq[1]}')
        a(f'v_cndmask_b32_e64 {Z[0][k]}, {Z[0][k]}, {E[2][k]}, {mq[2]}')
    dma(2)
    for x in cfma(Z[1], L16, Z[0], eA): a(x)
    for k in range(2):
        for x in cmul([KZr[k], KZi[k]], K, Z[k]): a(x)
    dma(2)
    U2 = V.alloc(32, 4)
    for s in range(16):
        a(f'v_pk_mul_f32 {u(U2, s)}, {K}, {u(accR, s)} op_sel_hi:[0,1]')
        a(f'v_pk_fma_f32 {u(U2, s)}, {K}, {u(accI, s)}, {u(U2, s)} {HI}{NEG}')
        a(f'v_pk_mul_f32 {u(accI, s)}, {K}, {u(accI, s)} op_sel_hi:[0,1] neg_lo:[1,0] neg_hi:[1,0]')
        a(f'v_pk_fma_f32 {u(accI, s)}, {K}, {u(accR, s)}, {u(accI, s)} {HI}{NEG}')
        dma(1)
    sigmoid_g(a, accG)
    dma(100)
    EG = [V.alloc(4, 4) for _ in range(4)]
    iss, chk = gather(a, [f'buffer_load_dwordx4 {EG[k]}, {vE[k]}, {rWS}, 0 offen sc1' for k in range(4)],
                      [EG[k][3] for k in range(4)], 'E', masks=valid)
    stamp(6)
    iss(); chk()
    stamp(7)
    for k in (2, 1, 0):
        for x in cfma(EG[k], L512, EG[k + 1], EG[k]): a(x)
    H = E[0]; H2 = E[1]
    for x in cmul(H, Lq128, EG[0]): a(x)
    for sw_op in ('v_permlane16_swap_b32', 'v_permlane32_swap_b32'):
        for k in range(2): a(f'v_mov_b32 {H2[k]}, {H[k]}')
        for k in range(2): a(f'{sw_op} {H[k]}, {H2[k]}')
        for k in range(2): a(f'v_add_f32 {H[k]}, {H[k]}, {H2[k]}')
    hr, hi = st[0]
    a(f'v_pk_fma_f32 {hr}, {H}, {KWr}, {KZr} {LO}')
    a(f'v_pk_fma_f32 {hi}, {H}, {KWi}, {KZi} {LO} neg_lo:[1,0,1] neg_hi:[1,0,1]')
    a(f'v_pk_fma_f32 {hr}, {H}, {KWi}, {hr} {HI}{NEG}')
    a(f'v_pk_fma_f32 {hi}, {H}, {KWr}, {hi} {HI}{NEG}')
    sH = S.alloc()
    a(f's_mul_i32 {sH}, {sc}, {8 * 48 * 1024}')
    a(f's_lshr_b32 {stmp}, {sb}, 4')
    a(f's_add_u32 {sH}, {sH}, {stmp}')
    a(f's_add_u32 {sH}, {sH}, {hx(WS_A)}')
    V.release(accR)
    PR = [V.alloc(4, 4), V.alloc(4, 4)]; T = [V.alloc(8, 4), V.alloc(8, 4)]; F = [V.alloc(4, 4), V.alloc(4, 4)]
    last = None
    def pack_store(mt):
        t = T[mt & 1]; f = F[mt & 1]
        for k in range(4): a(f'v_cvt_pk_bf16_f32 {f[k]}, {t[2 * k]}, {t[2 * k + 1]}')
        a(f's_add_u32 {stmp}, {sH}, {hx(mt * 48 * 1024)}')
        a(f'v_permlane16_swap_b32 {f[0]}, {f[2]}')
        a(f'v_permlane16_swap_b32 {f[1]}, {f[3]}')
        return a(f'buffer_store_dwordx4 {f}, {l16}, {rWS}, {stmp} offen sc1')
    for mt in range(8):
        for s in (2 * mt, 2 * mt + 1):
            nr, ni = u(U2, s), u(accI, s)
            a(f'v_pk_fma_f32 {nr}, {L1}, {hr}, {nr} {LO}')
            a(f'v_pk_fma_f32 {ni}, {L1}, {hi}, {ni} {LO}')
            a(f'v_pk_fma_f32 {nr}, {L1}, {hi}, {nr} {HI}')
            a(f'v_pk_fma_f32 {ni}, {L1}, {hr}, {ni} {HI}{NEG}')
            hr, hi = nr, ni
        p = PR[mt & 1]; t = T[mt & 1]
        a(f'v_cvt_pk_bf16_f32 {p[0]}, {U2[4 * mt]}, {U2[4 * mt + 1]}')
        a(f'v_cvt_pk_bf16_f32 {p[1]}, {U2[4 * mt + 2]}, {U2[4 * mt + 3]}')
        a(f'v_cvt_pk_bf16_f32 {p[2]}, {accI[4 * mt]}, {accI[4 * mt + 1]}')
        a(f'v_cvt_pk_bf16_f32 {p[3]}, {accI[4 * mt + 2]}, {accI[4 * mt + 3]}')
        if mt > 0: pack_store(mt - 1)
        a(f'v_mfma_f32_16x16x16_bf16 {t.sub(0, 4)}, {p.sub(0, 2)}, {ident}, 0')
        a(f'v_mfma_f32_16x16x16_bf16 {t.sub(4, 4)}, {p.sub(2, 2)}, {ident}, 0')
    last = pack_store(7)
    set_flag(a, V, 0, last)
    V.release(accI, U2, *PR, *T, *F, *EG, *E, G, *Z, KZr, KZi, *st[0], *st[1])
    A.release(gate, *FG)
    phase2(a, V, A, accG, w2tok[0])
    ytext = a.text()
    vhw = V.hw; ahw = A.hw; shw = S.hw

    a = ax; V = VX; A = AX; S = SX
    a.label('L_typeX')
    pstate['pend'] = pend_fork
    rW = srd(ptr(10), 1572864)
    swk = S.alloc(); swq = S.alloc()
    a(f's_mul_i32 {swq}, {sw}, {16 * 3072}')
    a(f's_lshl_b32 {stmp}, {stj}, 7')
    a(f's_add_u32 {swk}, {swq}, {stmp}')
    a(f's_add_u32 {swq}, {swk}, {swq}')
    def kv_dma(kb):
        return [f's_add_u32 m0, {slw}, {hx((kb % 3) * SLOT + 16384)}',
                f's_add_u32 {S_tmpw}, {swk}, {hx(kb * 64 * 3072 + 1024)}',
                f's_add_u32 {S_tmpw2}, {swk}, {hx(kb * 64 * 3072)}',
                f'buffer_load_dwordx4 {vw[0]}, {rW}, {S_tmpw} offen lds',
                f'buffer_load_dwordx4 {vw[1]}, {rW}, {S_tmpw} offen offset:1024 lds',
                f'buffer_load_dwordx4 {vw[0]}, {rW}, {S_tmpw2} offen offset:2048 lds',
                f'buffer_load_dwordx4 {vw[1]}, {rW}, {S_tmpw2} offen offset:3072 lds']
    def q_dma(g):
        return [f's_add_u32 m0, {slw}, {hx(LDS_F + g * 16384)}',
                f's_add_u32 {S_tmpw}, {swq}, {hx(g * 128 * 3072)}',
                f's_add_u32 {S_tmpw2}, {swq}, {hx(g * 128 * 3072 + 16 * 3072 - 2048)}',
                f'buffer_load_dwordx4 {vw[0]}, {rW}, {S_tmpw} offen lds',
                f'buffer_load_dwordx4 {vw[1]}, {rW}, {S_tmpw} offen offset:1024 lds',
                f'buffer_load_dwordx4 {vw[0]}, {rW}, {S_tmpw2} offen offset:2048 lds',
                f'buffer_load_dwordx4 {vw[1]}, {rW}, {S_tmpw2} offen offset:3072 lds']
    rdK = [V.alloc(), V.alloc()]; rdQ = [V.alloc() for _ in range(4)]
    a(f'v_and_b32 {t0}, 1, {vq}')
    a(f'v_lshrrev_b32 {t1}, 2, {vi}')
    a(f'v_lshl_add_u32 {t1}, {t0}, 3, {t1}')
    a(f'v_lshrrev_b32 {t2}, 3, {vi}')
    a(f'v_lshl_add_u32 {t2}, {t0}, 1, {t2}')
    a(f'v_lshlrev_b32 {t2}, 1, {t2}')
    a(f'v_bfe_u32 {t3}, {vi}, 1, 1')
    a(f'v_xor_b32 {t2}, {t2}, {t3}')
    a(f'v_lshlrev_b32 {t2}, 4, {t2}')
    a(f'v_lshl_add_u32 {t2}, {t1}, 7, {t2}')
    a(f'v_and_b32 {t3}, 1, {vi}')
    a(f'v_lshl_add_u32 {t2}, {t3}, 3, {t2}')
    a(f'v_lshrrev_b32 {t3}, 1, {vq}')
    a(f's_lshl_b32 {stmp}, {sw}, 5')
    a(f'v_xor_b32 {t1}, {stmp}, {t2}')
    a(f'v_lshl_add_u32 {rdK[0]}, {t3}, 12, {t1}')
    a(f'v_add_u32 {rdK[1]}, 0x10000, {rdK[0]}')
    a(f'v_lshl_add_u32 {t2}, {t3}, 11, {t2}')
    a(f'v_add_u32 {rdQ[0]}, {hx(LDS_F)}, {t2}')
    for j in range(1, 4): a(f'v_xor_b32 {rdQ[j]}, {32 * j}, {rdQ[0]}')
    rdO2 = [[V.alloc(), V.alloc()], [V.alloc(), V.alloc()]]
    for h in range(2):
        for ks in range(2):
            a(f'v_xor_b32 {rdO2[h][ks]}, 0x2000, {rdO[h][ks]}')
    def x_breads(kb, ks, buf):
        sl = (kb % 3) * SLOT; hi = sl >> 16; off = (sl & 0xffff) + 16384 + ks * 8192
        return [f'ds_read_b64_tr_b16 {buf.sub(4 * m + 2 * h, 2)}, {rdK[hi]} offset:{off + m * 2048 + h * 512}'
                for m in range(2) for h in range(2)]
    kept = [A.alloc(64, 4), A.alloc(64, 4)]
    def x_extra(kb, ks):
        sl = (kb % 3) * SLOT; hi = sl >> 16; off = sl & 0xffff; s = 2 * kb + ks
        return [f'ds_read_b128 {kept[0].sub(4 * s, 4)}, {rdO[hi][ks]} offset:{off}',
                f'ds_read_b128 {kept[1].sub(4 * s, 4)}, {rdO2[hi][ks]} offset:{off}']
    accK = V.alloc(32, 4); accV = V.alloc(32, 4); accG = V.alloc(4, 4)
    def x_mfmas(kb, ks, FA, FB):
        first = (kb == 0 and ks == 0)
        out = []
        for mt in range(8):
            for acc, b, c0_ in ((accK, 0, '1.0'), (accV, 4, '0')):
                c = c0_ if first else acc.sub(4 * mt, 4)
                out.append(f'v_mfma_f32_16x16x32_bf16 {acc.sub(4 * mt, 4)}, {FA.sub(4 * mt, 4)}, {FB.sub(b, 4)}, {c}')
        return out
    def pre_small(a): pass
    cL = V.alloc(2); ones = V.alloc(4, 4); eps4 = V.alloc(4, 4)
    S.release(P0, P1)
    me = [S.alloc(2) for _ in range(3)]
    vg1 = V.alloc(); sKV1 = S.alloc(); sKV1g = S.alloc(); sKV2 = S.alloc(); sKV2g = S.alloc()
    bg = [f's_add_u32 {stag}, {stag}, {hx(TAGINC)}',
          f'v_mov_b32 {cL[0]}, {LOG2E}', f'v_mov_b32 {cL[1]}, {hx(f2u(1e-6))}']
    bg += [f'v_mov_b32 {ones[k]}, 0x3f803f80' for k in range(4)]
    bg += [f'v_mov_b32 {eps4[k]}, {hx(f2u(1e-6))}' for k in range(4)]
    for k in range(3):
        m = 0x11111111 << (k + 1)
        bg += [f's_mov_b32 {me[k][0]}, {hx(m)}', f's_mov_b32 {me[k][1]}, {hx(m)}']
    bg += [f's_lshl2_add_u32 {stmp2}, {stj}, {sw}',
           f's_lshl_b32 {sKV1g}, {stmp2}, 15', f's_add_u32 {sKV1g}, {sKV1g}, {hx(WS_KV1)}',
           f's_lshl_b32 {sKV1}, {sc}, 11', f's_add_u32 {sKV1}, {sKV1}, {sKV1g}',
           f's_lshl_b32 {sKV2}, {sc}, 6', f's_add_u32 {sKV1g}, {sKV1g}, {sKV2}',
           f's_lshl_b32 {stmp2}, {stmp2}, 10', f's_add_u32 {sKV2}, {sKV2}, {stmp2}', f's_add_u32 {sKV2}, {sKV2}, {hx(WS_KV2)}',
           f's_lshl_b32 {sKV2g}, {stj}, 12', f's_add_u32 {sKV2g}, {sKV2g}, {hx(WS_KV2)}',
           f'v_lshrrev_b32 {vg1}, 2, {l}', f'v_lshlrev_b32 {vg1}, 11, {vg1}', f'v_and_b32 {t3}, 48, {l16}', f'v_add_u32 {vg1}, {vg1}, {t3}']
    qtok = [None, None]
    def trackq(i, lst):
        def last(): qtok[i] = a(lst[-1])
        return lst[:-1] + [last]
    late = [trackq(0, q_dma(0) + q_dma(1)), trackq(1, q_dma(2) + q_dma(3)), c_dma(0) + c_dma(1)]
    pend = phaseA(a, V, A, kv_dma, x_breads, x_mfmas, x_extra, late, bg)
    rest = pend + c_dma(2) + c_dma(3) + c_dma(4) + c_dma(5)
    ri = [0]; w2tok = [None]
    def phi(acc, dst, tmp, every=0):
        for g in range(0, 32, 4):
            for h in (0, 2):
                a(f'v_pk_fma_f32 {tmp.sub(h, 2)}, {acc.sub(g + h, 2)}, {cL}, {cL} op_sel_hi:[1,0,0] neg_lo:[0,0,1] neg_hi:[0,0,1]')
            for r in range(4): a(f'v_exp_f32_e64 {tmp[r]}, {tmp[r]} clamp')
            for r in range(4): a(f'v_max_f32 {tmp[r]}, {tmp[r]}, {acc[g + r]}')
            for h in (0, 2):
                a(f'v_pk_add_f32 {tmp.sub(h, 2)}, {tmp.sub(h, 2)}, {cL} op_sel:[0,1]')
            for h in (0, 2):
                a(f'v_cvt_pk_bf16_f32 {dst[(g + h) // 2]}, {tmp[h]}, {tmp[h + 1]}')
            if every: dma(every)
    PK = V.alloc(16, 4); VV = V.alloc(16, 4); tmp = V.alloc(4, 4)
    G1 = V.alloc(4, 4); G2 = V.alloc(4, 4); ZZ = V.alloc(4, 4)
    phi(accK, PK, tmp, every=1)
    for k in range(16): a(f'v_cvt_pk_bf16_f32 {VV[k]}, {accV[2 * k]}, {accV[2 * k + 1]}')
    for uu in range(4):
        a(f'v_mfma_f32_16x16x32_bf16 {ZZ}, {PK.sub(4 * uu, 4)}, {ones}, {"0" if uu == 0 else ZZ}')
        a(f'v_mfma_f32_16x16x32_bf16 {G1}, {PK.sub(4 * uu, 4)}, {VV.sub(4 * uu, 4)}, {"0" if uu == 0 else G1}')
    a(f'v_mov_b32 {G2[2]}, {stag}'); a(f'v_mov_b32 {G2[3]}, {stag}')
    dma(2)
    a(f'v_cndmask_b32_e64 {G2[1]}, {ZZ[0]}, {ZZ[1]}, {me[0]}')
    a(f'v_cndmask_b32_e64 {G2[1]}, {G2[1]}, {ZZ[2]}, {me[1]}')
    a(f'v_cndmask_b32_e64 {G2[1]}, {G2[1]}, {ZZ[3]}, {me[2]}')
    a(f'v_mov_b32 {G2[0]}, {G1[3]}')
    a(f'v_mov_b32 {G1[3]}, {stag}')
    a(f'buffer_store_dwordx4 {G1}, {l16}, {rWS}, {sKV1} offen sc1')
    a(f'buffer_store_dwordx4 {G2}, {l16}, {rWS}, {sKV1} offen offset:1024 sc1')
    stamp(5)
    V.release(accK, accV, PK, VV)
    accQ = V.alloc(32, 4)
    QB = [V.alloc(16, 4) for _ in range(3)]
    R1 = V.alloc(4, 4); R2 = V.alloc(4, 4); R3 = V.alloc(4, 4); rt = V.alloc(5)
    def q_reads(s):
        return [f'ds_read_b64_tr_b16 {QB[s % 3].sub(4 * j + 2 * h, 2)}, {rdQ[j]} offset:{s * 4096 + h * 512}'
                for j in range(4) for h in range(2)]
    iss1, chk1 = gather(a, [f'buffer_load_dwordx4 {R1}, {vg1}, {rWS}, {sKV1g} offen sc1',
                            f'buffer_load_dwordx4 {R2}, {vg1}, {rWS}, {sKV1g} offen offset:1024 sc1'], [R1[3], R2[3]], 'kv1')
    vals = [R1[0], R1[1], R1[2], R2[0], R2[1]]
    red = []
    for ror in (4, 8):
        red += [f'v_add_f32_dpp {x}, {x}, {x} row_ror:{ror} row_mask:0xf bank_mask:0xf' for x in vals]
    for sw_op in ('v_permlane16_swap_b32', 'v_permlane32_swap_b32'):
        red += [f'v_mov_b32 {rt[k]}, {x}' for k, x in enumerate(vals)]
        red += [f'{sw_op} {x}, {rt[k]}' for k, x in enumerate(vals)]
        red += [f'v_add_f32 {x}, {x}, {rt[k]}' for k, x in enumerate(vals)]
    red += [f'v_cvt_pk_bf16_f32 {R3[0]}, {R1[0]}, {R1[1]}', f'v_cvt_pk_bf16_f32 {R3[1]}, {R1[2]}, {R2[0]}',
            f'v_mov_b32 {R3[2]}, {R2[1]}', f'v_mov_b32 {R3[3]}, {stag}']
    def pub2():
        a('s_mov_b64 exec, 0xf')
        a(f'buffer_store_dwordx4 {R3}, {l16}, {rWS}, {sKV2} offen sc1')
        a('s_mov_b64 exec, -1')
    red.append(pub2)
    a.wait_tok(qtok[1])
    a('s_barrier')
    for x in q_reads(0): a(x)
    redi = 0
    for s in range(16):
        fill = q_reads(s + 1) if s < 15 else []
        fill.append(lambda: dma(2))
        if s == 4: fill.append(iss1)
        if s == 8: fill.append(chk1)
        if s >= 8:
            fill += red[redi:redi + 9]; redi += 9
        m = []
        for j in range(4):
            for uu in range(2):
                acc = accQ.sub(16 * uu + 4 * j, 4)
                m.append(f'v_mfma_f32_16x16x32_bf16 {acc}, {QB[s % 3].sub(4 * j, 4)}, {kept[uu].sub(4 * s, 4)}, {"1.0" if s == 0 else acc}')
        m.append(f'v_mfma_f32_16x16x32_bf16 {accG}, {kept[0].sub(4 * s, 4)}, {gate.sub(4 * s, 4)}, {"0" if s == 0 else accG}')
        interleave(a, m, fill, per_gap=2)
    assert redi >= len(red)
    stamp(6)
    dma(100)
    a('s_barrier')
    rest = c_dma(6) + c_dma(7) + wo_dma(0) + wo_dma(1); ri[0] = 0
    V.release(*QB)
    PQ = V.alloc(16, 4)
    KV = [V.alloc(4, 4) for _ in range(4)]
    iss2, chk2 = gather(a, [f'buffer_load_dwordx4 {KV[j]}, {l16}, {rWS}, {sKV2g} offen offset:{j * 1024} sc1' for j in range(4)],
                        [KV[j][3] for j in range(4)], 'kv2')
    phi(accQ, PQ, tmp, every=2)
    iss2()
    sigmoid_g(a, accG)
    dma(100)
    chk2()
    stamp(7)
    for j in range(4):
        for k in range(4):
            a(f'v_mov_b32_dpp {tmp[k]}, {KV[j][2]} quad_perm:[{k},{k},{k},{k}] row_mask:0xf bank_mask:0xf')
        a(f'v_cvt_pk_bf16_f32 {KV[j][2]}, {tmp[0]}, {tmp[1]}')
        a(f'v_cvt_pk_bf16_f32 {KV[j][3]}, {tmp[2]}, {tmp[3]}')
    DEN = V.alloc(32, 4)
    for uu in range(2):
        for j in range(4):
            b = PQ.sub(8 * uu + 2 * j, 2)
            a(f'v_mfma_f32_16x16x16_bf16 {DEN.sub(16 * uu + 4 * j, 4)}, {KV[j].sub(2, 2)}, {b}, {eps4}')
            a(f'v_mfma_f32_16x16x16_bf16 {accQ.sub(16 * uu + 4 * j, 4)}, {KV[j].sub(0, 2)}, {b}, 0')
    sO = [S.alloc(), S.alloc()]
    a(f's_lshl3_add_u32 {sO[0]}, {sc}, {smt}')
    a(f's_xor_b32 {sO[1]}, {sO[0]}, 4')
    a(f's_lshl_b32 {stmp}, {stj}, 11')
    a(f's_add_u32 {stmp}, {stmp}, {hx(WS_A + 32 * 1024)}')
    for uu in range(2):
        a(f's_mul_i32 {sO[uu]}, {sO[uu]}, {48 * 1024}')
        a(f's_add_u32 {sO[uu]}, {sO[uu]}, {stmp}')
    last = None
    for uu in range(2):
        for j in range(4):
            d = DEN.sub(16 * uu + 4 * j, 4)
            a(f'v_rcp_f32 {d[0]}, {d[0]}')
        for j in range(4):
            d = DEN.sub(16 * uu + 4 * j, 4); nq = accQ.sub(16 * uu + 4 * j, 4)
            for h in (0, 2):
                a(f'v_pk_mul_f32 {nq.sub(h, 2)}, {nq.sub(h, 2)}, {d.sub(0, 2)} op_sel_hi:[1,0]')
            for h in (0, 2):
                a(f'v_cvt_pk_bf16_f32 {PQ[8 * uu + 2 * j + h // 2]}, {nq[h]}, {nq[h + 1]}')
            if j & 1:
                last = a(f'buffer_store_dwordx4 {PQ.sub(8 * uu + 2 * j - 2, 4)}, {l16}, {rWS}, {sO[uu]} offen offset:{(j >> 1) * 1024} sc1')
    set_flag(a, V, 1, last)
    V.release(accQ, DEN, PQ, *KV)
    A.release(gate, *kept)
    phase2(a, V, A, accG, w2tok[0])
    xtext = a.text()
    vhw = max(vhw, V.hw); ahw = max(ahw, A.hw); shw = max(shw, S.hw)

    hdr = open('gated_mix__ssm_conv_s5__linear_attn_block__prompt.s.ref').read().split('; Override launch')[0]
    out = hdr + f'''; @launch grid=(256,1,1) block=(256,1,1) lds=163840
.amdgcn_target "amdgcn-amd-amdhsa--gfx950"
.text
.globl {NAME}
.p2align 8
.type {NAME},@function
{NAME}:
{ytext}
{xtext}
L_end:
    s_endpgm
.section .rodata,"a"
.p2align 6
.amdhsa_kernel {NAME}
  .amdhsa_next_free_vgpr 512
  .amdhsa_next_free_sgpr 102
  .amdhsa_accum_offset 256
  .amdhsa_group_segment_fixed_size 0
  .amdhsa_kernarg_size 128
  .amdhsa_user_sgpr_count 2
  .amdhsa_user_sgpr_kernarg_segment_ptr 1
  .amdhsa_system_sgpr_workgroup_id_x 1
.end_amdhsa_kernel
'''
    print(f'vgpr hw {vhw} agpr hw {ahw} sgpr hw {shw}', file=sys.stderr)
    return out

if __name__ == '__main__':
    cfg = Cfg()
    outp = sys.argv[1] if len(sys.argv) > 1 else 'gated_mix__ssm_conv_s5__linear_attn_block__prompt.s'
    for kv in sys.argv[2:]:
        k, v = kv.split('='); setattr(cfg, k, eval(v))
    txt = build(cfg)
    open(outp, 'w').write(txt)
```

```python
import sys
N='gated_mix__ssm_conv_s5__linear_attn_block__prompt_kernel'
def make(src, dst, mode, k=0, wg=None):
    s=open(src).read()
    L="; @launch grid=(256,1,1) block=(256,1,1) lds=163840\n"
    main=f"; @launch kernel={N} grid=(256,1,1) block=(256,1,1) lds=163840\n"
    amp="; @launch kernel=amp_kernel grid=(1,1,1) block=(64,1,1) lds=0\n"
    b=[]
    A=b.append
    A("s_cmp_ge_u32 s2, 1"); A("s_cbranch_scc1 A_end")
    A("s_load_dwordx2 s[4:5], s[0:1], 120"); A("s_waitcnt lgkmcnt(0)")
    A("s_add_u32 s4, s4, 0x180000"); A("s_addc_u32 s5, s5, 0")
    if mode == "wall":
        A("s_mov_b32 s8, -1"); A("s_mov_b32 s9, 0"); A("s_mov_b32 s10, 0")
        A("A_l:")
        A("s_load_dwordx2 s[12:13], s[4:5], 120"); A("s_waitcnt lgkmcnt(0)")
        A("s_min_u32 s8, s8, s12"); A("s_max_u32 s9, s9, s13")
        A("s_add_u32 s4, s4, 512"); A("s_addc_u32 s5, s5, 0")
        A("s_add_u32 s10, s10, 1"); A("s_cmp_lt_u32 s10, 256"); A("s_cbranch_scc1 A_l")
        A("s_sub_u32 s14, s9, s8"); A(f"s_mul_i32 s14, s14, {k}")
    elif mode == "cyc":
        A(f"s_load_dword s12, s[4:5], {wg*512}"); A(f"s_load_dword s13, s[4:5], {wg*512+4*k}"); A("s_waitcnt lgkmcnt(0)")
        A("s_sub_u32 s14, s13, s12")
    A("s_min_u32 s14, s14, 200000")
    A("s_memrealtime s[16:17]"); A("s_waitcnt lgkmcnt(0)")
    A("A_s:")
    A("s_memrealtime s[18:19]"); A("s_waitcnt lgkmcnt(0)")
    A("s_sub_u32 s20, s18, s16"); A("s_cmp_lt_u32 s20, s14"); A("s_cbranch_scc1 A_s")
    A("A_end:"); A("s_endpgm")
    extra = "\n.text\n.globl amp_kernel\n.p2align 8\n.type amp_kernel,@function\namp_kernel:\n" + "\n".join(b) + """
.section .rodata,"a"
.p2align 6
.amdhsa_kernel amp_kernel
  .amdhsa_next_free_vgpr 8
  .amdhsa_next_free_sgpr 32
  .amdhsa_accum_offset 8
  .amdhsa_group_segment_fixed_size 0
  .amdhsa_kernarg_size 128
  .amdhsa_user_sgpr_count 2
  .amdhsa_user_sgpr_kernarg_segment_ptr 1
  .amdhsa_system_sgpr_workgroup_id_x 1
.end_amdhsa_kernel
"""
    open(dst,'w').write(s.replace(L, main+amp)+extra)
if __name__ == "__main__":
    src = sys.argv[1]
    for i,spec in enumerate(sys.argv[2:]):
        p = spec.split(":")
        make(src, f"amp{i}.s", p[0], int(p[1]), int(p[2]) if len(p)>2 else None)
```

```python
import sys
sys.path.insert(0,'work')
import amp
N='gated_mix__ssm_conv_s5__linear_attn_block__prompt_kernel'
def probe_body():
    b=[]; A=b.append
    A("s_memtime s[30:31]")
    A("s_cmp_ge_u32 s2, 256"); A("s_cbranch_scc1 P_end")
    A("s_load_dwordx2 s[4:5], s[0:1], 72")
    A("s_load_dwordx2 s[6:7], s[0:1], 120")
    A("s_waitcnt lgkmcnt(0)")
    A("s_memtime s[32:33]")
    A("s_mov_b32 s8, s4"); A("s_mov_b32 s9, s5"); A("s_mov_b32 s10, 0x200000"); A("s_mov_b32 s11, 0x20000")
    A("s_mov_b32 s12, s6"); A("s_mov_b32 s13, s7"); A("s_mov_b32 s14, 0x800000"); A("s_mov_b32 s15, 0x20000")
    A("v_lshlrev_b32 v4, 4, v0")
    A("s_lshl_b32 s16, s2, 13")
    A("s_waitcnt lgkmcnt(0)")
    A("buffer_load_dwordx4 v[8:11], v4, s[8:11], s16 offen")
    A("s_waitcnt vmcnt(0)")
    A("s_memtime s[34:35]")
    A("s_add_u32 s16, s16, 4096")
    A("s_waitcnt lgkmcnt(0)")
    A("buffer_load_dwordx4 v[8:11], v4, s[8:11], s16 offen")
    A("s_waitcnt vmcnt(0)")
    A("s_memtime s[36:37]")
    A("s_lshl_b32 s17, s2, 12"); A("s_add_u32 s17, s17, 0x600000")
    A("s_waitcnt lgkmcnt(0)")
    A("buffer_load_dwordx4 v[8:11], v4, s[12:15], s17 offen")
    A("s_waitcnt vmcnt(0)")
    A("s_memtime s[38:39]")
    A("s_add_u32 s17, s17, 0x100000")
    A("s_waitcnt lgkmcnt(0)")
    A("buffer_store_dwordx4 v[8:11], v4, s[12:15], s17 offen sc1")
    A("s_waitcnt vmcnt(0)")
    A("s_memtime s[40:41]")
    for i in range(2048): A("v_mov_b32 v5, v4")
    A("s_memtime s[42:43]")
    A("s_waitcnt lgkmcnt(0)")
    A("v_mov_b32 v20, 0")
    for k in range(1,7):
        A(f"s_sub_u32 s26, s{30+2*k}, s{28+2*k}"); A(f"v_writelane_b32 v20, s26, {k}")
    A("s_lshl_b32 s27, s2, 9"); A("s_add_u32 s27, s27, 0x180000")
    A("v_lshlrev_b32 v7, 2, v0")
    A("v_cmp_gt_u32 vcc, 16, v0"); A("s_and_saveexec_b64 s[20:21], vcc"); A("s_cbranch_execz P_end")
    A("buffer_store_dword v20, v7, s[12:15], s27 offen")
    A("P_end:"); A("s_endpgm")
    return "\n".join(b)
KD = """
.section .rodata,"a"
.p2align 6
.amdhsa_kernel probe_kernel
  .amdhsa_next_free_vgpr 64
  .amdhsa_next_free_sgpr 64
  .amdhsa_accum_offset 64
  .amdhsa_group_segment_fixed_size 0
  .amdhsa_kernarg_size 128
  .amdhsa_user_sgpr_count 2
  .amdhsa_user_sgpr_kernarg_segment_ptr 1
  .amdhsa_system_sgpr_workgroup_id_x 1
.end_amdhsa_kernel
"""
for k in range(0,7):
    dst=f"pr{k}.s"
    amp.make('k0.s', dst, 'cyc', k, 100)
    s=open(dst).read()
    main=f"; @launch kernel={N} grid"
    s=s.replace(main, "; @launch kernel=probe_kernel grid=(256,1,1) block=(256,1,1) lds=131072\n"+main,1)
    s+= "\n.text\n.globl probe_kernel\n.p2align 8\n.type probe_kernel,@function\nprobe_kernel:\n"+probe_body()+KD
    open(dst,'w').write(s)
```

```python
import sys
N='gated_mix__ssm_conv_s5__linear_attn_block__prompt_kernel'
def make(src, dst, mode, k=0, wg=None):
    s=open(src).read()
    L="; @launch grid=(256,1,1) block=(256,1,1) lds=163840\n"
    main=f"; @launch kernel={N} grid=(256,1,1) block=(256,1,1) lds=163840\n"
    amp="; @launch kernel=amp_kernel grid=(1,1,1) block=(64,1,1) lds=0\n"
    b=[]
    A=b.append
    A("s_cmp_ge_u32 s2, 1"); A("s_cbranch_scc1 A_end")
    A("s_load_dwordx2 s[4:5], s[0:1], 120"); A("s_waitcnt lgkmcnt(0)")
    A("s_add_u32 s4, s4, 0x180000"); A("s_addc_u32 s5, s5, 0")
    if mode == "wall":
        A("s_mov_b32 s8, -1"); A("s_mov_b32 s9, 0"); A("s_mov_b32 s10, 0")
        A("A_l:")
        A("s_load_dwordx2 s[12:13], s[4:5], 120"); A("s_waitcnt lgkmcnt(0)")
        A("s_min_u32 s8, s8, s12"); A("s_max_u32 s9, s9, s13")
        A("s_add_u32 s4, s4, 512"); A("s_addc_u32 s5, s5, 0")
        A("s_add_u32 s10, s10, 1"); A("s_cmp_lt_u32 s10, 256"); A("s_cbranch_scc1 A_l")
        A("s_sub_u32 s14, s9, s8"); A(f"s_mul_i32 s14, s14, {k}")
    elif mode == "cyc":
        A(f"s_load_dword s12, s[4:5], {wg*512}"); A(f"s_load_dword s13, s[4:5], {wg*512+4*k}"); A("s_waitcnt lgkmcnt(0)")
        A("s_sub_u32 s14, s13, s12")
    elif mode == "xcc":
        for i in range(16): A(f"s_load_dword s{8+i}, s[4:5], {i*8*512+116}")
        A("s_waitcnt lgkmcnt(0)")
        A("s_mov_b32 s26, 0")
        for i in range(1,16): A(f"s_cmp_lg_u32 s8, s{8+i}"); A("s_addc_u32 s26, s26, 0")
        A(f"s_mul_i32 s14, s26, {k}")
    elif mode == "rt":
        A(f"s_load_dword s12, s[4:5], {wg*512+120}"); A(f"s_load_dword s13, s[4:5], {wg*512+4*k}"); A("s_waitcnt lgkmcnt(0)")
        A("s_sub_u32 s14, s13, s12"); A("s_mul_i32 s14, s14, 10")
    elif mode == "tick":
        A(f"s_load_dword s12, s[4:5], {wg*512+120}"); A(f"s_load_dword s13, s[4:5], {wg*512+124}"); A("s_waitcnt lgkmcnt(0)")
        A("s_sub_u32 s14, s13, s12"); A(f"s_mul_i32 s14, s14, {k}")
    elif mode == "skew":
        for i in range(8): A(f"s_load_dword s{20+i}, s[4:5], {i*512+120}")
        A("s_waitcnt lgkmcnt(0)")
        A("s_mov_b32 s8, s20"); A("s_mov_b32 s9, s20")
        for i in range(1,8): A(f"s_min_u32 s8, s8, s{20+i}"); A(f"s_max_u32 s9, s9, s{20+i}")
        A("s_sub_u32 s14, s9, s8"); A(f"s_mul_i32 s14, s14, {k}")
    A("s_min_u32 s14, s14, 200000")
    A("s_memrealtime s[16:17]"); A("s_waitcnt lgkmcnt(0)")
    A("A_s:")
    A("s_memrealtime s[18:19]"); A("s_waitcnt lgkmcnt(0)")
    A("s_sub_u32 s20, s18, s16"); A("s_cmp_lt_u32 s20, s14"); A("s_cbranch_scc1 A_s")
    A("A_end:"); A("s_endpgm")
    extra = "\n.text\n.globl amp_kernel\n.p2align 8\n.type amp_kernel,@function\namp_kernel:\n" + "\n".join(b) + """
.section .rodata,"a"
.p2align 6
.amdhsa_kernel amp_kernel
  .amdhsa_next_free_vgpr 8
  .amdhsa_next_free_sgpr 32
  .amdhsa_accum_offset 8
  .amdhsa_group_segment_fixed_size 0
  .amdhsa_kernarg_size 128
  .amdhsa_user_sgpr_count 2
  .amdhsa_user_sgpr_kernarg_segment_ptr 1
  .amdhsa_system_sgpr_workgroup_id_x 1
.end_amdhsa_kernel
"""
    open(dst,'w').write(s.replace(L, main+amp)+extra)
if __name__ == "__main__":
    src = sys.argv[1]
    for i,spec in enumerate(sys.argv[2:]):
        p = spec.split(":")
        make(src, f"amp{i}.s", p[0], int(p[1]), int(p[2]) if len(p)>2 else None)
```

```python
import sys
sys.path.insert(0,'work')
import amp
N='gated_mix__ssm_conv_s5__linear_attn_block__prompt_kernel'
def probe_body():
    b=[]; A=b.append
    A("s_cmp_ge_u32 s2, 256"); A("s_cbranch_scc1 P_end")
    A("s_load_dwordx16 s[44:59], s[0:1], 0")
    A("s_load_dwordx16 s[60:75], s[0:1], 64")
    A("s_waitcnt lgkmcnt(0)")
    A("s_mov_b32 s12, s74"); A("s_mov_b32 s13, s75"); A("s_mov_b32 s14, 0x800000"); A("s_mov_b32 s15, 0x20000")
    A("v_lshlrev_b32 v4, 4, v0")
    A("s_mov_b32 s11, 0x20000")
    bufs = [(0,2097152),(10,1572864),(3,524288),(5,524288),(11,524288),(9,2097152)]
    A("s_memtime s[30:31]")
    for k,(pi,sz) in enumerate(bufs):
        per = sz//256
        A(f"s_mov_b32 s8, s{44+2*pi}"); A(f"s_mov_b32 s9, s{45+2*pi}"); A(f"s_mov_b32 s10, {sz}")
        A(f"s_mul_i32 s16, s2, {per}")
        A("s_waitcnt lgkmcnt(0)")
        A(f"v_min_u32 v5, {per-16}, v4")
        A("buffer_load_dwordx4 v[8:11], v5, s[8:11], s16 offen")
        if per > 4096:
            A(f"v_add_u32 v5, 4096, v4"); A(f"v_min_u32 v5, {per-16}, v5")
            A("buffer_load_dwordx4 v[12:15], v5, s[8:11], s16 offen")
        A("s_waitcnt vmcnt(0)")
        A("s_barrier")
        A(f"s_memtime s[{32+2*k}:{33+2*k}]")
    A("s_waitcnt lgkmcnt(0)")
    A("v_mov_b32 v20, 0")
    for k in range(1,7):
        A(f"s_sub_u32 s26, s{30+2*k}, s{28+2*k}"); A(f"v_writelane_b32 v20, s26, {k}")
    A("s_lshl_b32 s27, s2, 9"); A("s_add_u32 s27, s27, 0x180000")
    A("v_lshlrev_b32 v7, 2, v0")
    A("v_cmp_gt_u32 vcc, 16, v0"); A("s_and_saveexec_b64 s[20:21], vcc"); A("s_cbranch_execz P_end")
    A("buffer_store_dword v20, v7, s[12:15], s27 offen")
    A("P_end:"); A("s_endpgm")
    return "\n".join(b)
KD = """
.section .rodata,"a"
.p2align 6
.amdhsa_kernel probe_kernel
  .amdhsa_next_free_vgpr 64
  .amdhsa_next_free_sgpr 96
  .amdhsa_accum_offset 64
  .amdhsa_group_segment_fixed_size 0
  .amdhsa_kernarg_size 128
  .amdhsa_user_sgpr_count 2
  .amdhsa_user_sgpr_kernarg_segment_ptr 1
  .amdhsa_system_sgpr_workgroup_id_x 1
.end_amdhsa_kernel
"""
for k in range(0,7):
    dst=f"pr{k}.s"
    amp.make('k3.s', dst, 'cyc', k, 100)
    s=open(dst).read()
    main=f"; @launch kernel={N} grid"
    s=s.replace(main, "; @launch kernel=probe_kernel grid=(256,1,1) block=(256,1,1) lds=131072\n"+main,1)
    s+= "\n.text\n.globl probe_kernel\n.p2align 8\n.type probe_kernel,@function\nprobe_kernel:\n"+probe_body()+KD
    open(dst,'w').write(s)
```
